```python
import torch

def _softmax(x, axis=-1):
    return torch.softmax(x, dim=axis)
def _gelu(x):
    return torch.nn.functional.gelu(x, approximate="tanh")
def _silu(x):
    return torch.nn.functional.silu(x)
def _sigmoid(x):
    return torch.sigmoid(x)
def _layernorm(x, axis=-1, eps=1e-5):
    m = x.mean(dim=axis, keepdim=True)
    v = x.var(dim=axis, keepdim=True, unbiased=False)
    return (x - m) / torch.sqrt(v + eps)
def _scatter_add(tgt, idx, src, axis=0):
    return tgt.clone().index_add_(axis, idx, src)
def _segment_sum(src, seg, n):
    out = torch.zeros((n,) + src.shape[1:], dtype=src.dtype)
    return out.index_add_(0, seg, src)
def _pad(x, pw):
    flat = tuple(v for pair in reversed(pw) for v in pair)
    return torch.nn.functional.pad(x, flat)

kernel_name = 'parallel_sum__sliding_local_dilated__moe_arch_mod__prompt'

def setup_inputs():

    _w = (lambda a: (lambda t: t.to(torch.bfloat16) if t.is_floating_point() else t)(torch.as_tensor(a)))
    def _A_setup():
        B, S, D = 1, 2048, 1024
        return {
            "x": _w((lambda *s: torch.randn(*s, dtype=torch.bfloat16) * 0.05)(B, S, D)),
            "wqkv": _w((lambda *s: torch.randn(*s, dtype=torch.bfloat16) * 0.05)(D, 3 * D)),
            "wo": _w((lambda *s: torch.randn(*s, dtype=torch.bfloat16) * 0.05)(D, D)),
        }
    _A_in = _A_setup()

    def _B_setup():
        B, S, D, F, C = 1, 2048, 1024, 3584, 8
        return {
            "x": _w((lambda *s: torch.randn(*s, dtype=torch.bfloat16) * 0.05)(B, S, D)),
            "w_r": _w((lambda *s: torch.randn(*s, dtype=torch.bfloat16) * 0.05)(D)),
            "w_gate": _w((lambda *s: torch.randn(*s, dtype=torch.bfloat16) * 0.05)(D, F)),
            "w_up": _w((lambda *s: torch.randn(*s, dtype=torch.bfloat16) * 0.05)(D, F)),
            "w_down": _w((lambda *s: torch.randn(*s, dtype=torch.bfloat16) * 0.05)(F, D)),
        }
    _B_in = _B_setup()

    return {
        "A_x": _A_in["x"],
        "A_wqkv": _A_in["wqkv"],
        "A_wo": _A_in["wo"],
        "B_x": _B_in["x"],
        "B_w_r": _B_in["w_r"],
        "B_w_gate": _B_in["w_gate"],
        "B_w_up": _B_in["w_up"],
        "B_w_down": _B_in["w_down"],
    }

def reference(A_x, A_wqkv, A_wo, B_x, B_w_r, B_w_gate, B_w_up, B_w_down):
    def _A_ref(x, wqkv, wo):
        B, S, D = x.shape
        H = 32; Dh = D // H
        W, dil = 8, 2
        qkv = (lambda x, *d: x.permute(*d))((x @ wqkv).reshape(B, S, 3, H, Dh), 2, 0, 3, 1, 4)
        q, k, v = qkv[0], qkv[1], qkv[2]
        scale = Dh ** -0.5
        pos = torch.arange(S)
        off = torch.arange(W) * dil
        idx = pos[:, None] - off[None, :]
        mask = idx >= 0
        idx_c = torch.where(mask, idx, 0).reshape(-1)
        kg = k[:, :, idx_c, :].reshape(B, H, S, W, Dh)
        vg = v[:, :, idx_c, :].reshape(B, H, S, W, Dh)
        logits = torch.einsum("bhsd,bhswd->bhsw", q, kg) * scale
        logits = torch.where(mask[None, None, :, :], logits, -1e9)
        attn = _softmax(logits, axis=-1)
        o = torch.einsum("bhsw,bhswd->bhsd", attn, vg)
        return (lambda x, *d: x.permute(*d))(o, 0, 2, 1, 3).reshape(B, S, D) @ wo

    def _B_ref(x, w_r, w_gate, w_up, w_down):
        B, S, D = x.shape
        C = 8
        r = x @ w_r
        idx = torch.argsort(-r, axis=-1)[:, :C]
        idx_e = (lambda x, n, axis: torch.repeat_interleave(x, n, dim=axis))(idx.reshape(B, C, 1), D, axis=2)
        x_sel = (lambda x, i, axis: torch.take_along_dim(x, i, dim=axis))(x, idx_e, axis=1)
        g = _silu(x_sel @ w_gate)
        u = x_sel @ w_up
        y = (g * u) @ w_down
        r_sel = _sigmoid((lambda x, i, axis: torch.take_along_dim(x, i, dim=axis))(r, idx, axis=1))
        y = y * r_sel.reshape(B, C, 1)
        b_off = (torch.arange(B) * S).reshape(B, 1)
        flat_idx = (idx + b_off).reshape(B * C)
        zero = (x * 0.0).reshape(B * S, D)
        upd = _scatter_add(zero, flat_idx, y.reshape(B * C, D), axis=0)
        return x + upd.reshape(B, S, D)

    x = A_x
    xn = _layernorm(x, axis=-1)
    return x + _A_ref(xn, A_wqkv, A_wo) + _B_ref(xn, B_w_r, B_w_gate, B_w_up, B_w_down)
```

```python
import re

_REG = re.compile(r'^(-|\|)?(abs\()?([vsa])(?:(\d+)|\[(\d+):(\d+)\])\)?\|?$')

def regs_of(tok):
    tok = tok.strip()
    if tok in ("vcc",): return {("s", 106), ("s", 107)}
    if tok == "vcc_lo": return {("s", 106)}
    if tok == "vcc_hi": return {("s", 107)}
    if tok == "exec": return {("s", 126), ("s", 127)}
    if tok == "exec_lo": return {("s", 126)}
    if tok == "exec_hi": return {("s", 127)}
    if tok == "m0": return {("s", 124)}
    m = _REG.match(tok)
    if not m: return set()
    f = m.group(3)
    if m.group(4) is not None:
        return {(f, int(m.group(4)))}
    return {(f, i) for i in range(int(m.group(5)), int(m.group(6)) + 1)}

def split_ops(s):
    out, depth, cur = [], 0, ""
    for ch in s:
        if ch in "[(": depth += 1
        if ch in "])": depth -= 1
        if ch == "," and depth == 0:
            out.append(cur.strip()); cur = ""
        else:
            cur += ch
    if cur.strip(): out.append(cur.strip())
    return out

TRANS = ("v_exp_f32", "v_log_f32", "v_rcp_f32", "v_rsq_f32", "v_sqrt_f32", "v_sin_f32", "v_cos_f32", "v_rcp_iflag_f32")

class Ins:
    __slots__ = ("text", "mn", "cls", "wr", "rd", "ws", "dpp", "mA", "mB", "mC", "passes", "lds", "vsrc", "stdata", "lanesel", "sdwa")
    def __init__(self, text):
        self.text = text
        t = text.split(";")[0].strip()
        parts = t.split(None, 1)
        self.mn = mn = parts[0]
        rest = parts[1] if len(parts) > 1 else ""
        ops = split_ops(rest)
        mods = ""
        if ops:
            last = ops[-1].split(None, 1)
            ops[-1] = last[0]
            mods = last[1] if len(last) > 1 else ""
        self.wr, self.rd = set(), set()
        self.ws = 1
        self.dpp = ("_dpp" in mn) or any(k in mods for k in ("row_", "quad_perm", "wave_"))
        self.sdwa = "_sdwa" in mn
        self.mA = self.mB = self.mC = set(); self.passes = 0
        self.lds = False; self.stdata = set(); self.lanesel = set(); self.vsrc = set()
        R = [regs_of(o) for o in ops]
        if mn == "s_nop":
            self.cls = "nop"; self.ws = int(ops[0], 0) + 1
        elif mn.startswith("v_mfma"):
            self.cls = "mfma"
            self.wr = R[0]; self.mA, self.mB, self.mC = R[1], R[2], R[3]
            self.rd = R[1] | R[2] | R[3]
            self.passes = 8 if "32x32" in mn else 4
        elif mn.startswith("v_cmp"):
            self.cls = "valu"; self.wr = set(R[0])
            if mn.startswith("v_cmpx"): self.wr |= regs_of("exec")
            for r in R[1:]: self.rd |= r
        elif mn.startswith(("v_readlane", "v_readfirstlane")):
            self.cls = "valu"; self.wr = R[0]; self.rd = set(R[1])
            if len(R) > 2: self.lanesel = R[2]; self.rd |= R[2]
        elif mn.startswith("v_writelane"):
            self.cls = "valu"; self.wr = R[0]; self.rd = R[0] | R[1] | R[2]; self.lanesel = R[2]
        elif mn.startswith("v_permlane"):
            self.cls = "valu"; self.wr = R[0] | R[1]; self.rd = R[0] | R[1]
        elif mn.startswith(("v_add_co", "v_sub_co", "v_subrev_co", "v_addc_co", "v_subb_co", "v_mad_u64", "v_div_scale")):
            self.cls = "valu"; self.wr = R[0] | R[1]
            for r in R[2:]: self.rd |= r
        elif mn.startswith("v_"):
            self.cls = "valu"; self.wr = set(R[0])
            for r in R[1:]: self.rd |= r
            if mn.startswith("v_dot"): self.vsrc = R[1] | R[2]
            if mn.startswith(("v_fmac", "v_dot2c", "v_pk_fmac")) or self.dpp or self.sdwa: self.rd |= R[0]
            if mn.startswith("v_cndmask") and len(R) == 3: self.rd |= regs_of("vcc")
        elif mn.startswith("ds_"):
            self.cls = "ds"
            if mn.startswith(("ds_read", "ds_bpermute", "ds_permute", "ds_swizzle")) or "_rtn" in mn:
                self.wr = R[0]
                for r in R[1:]: self.rd |= r
            else:
                for r in R: self.rd |= r
        elif mn.startswith(("buffer_", "global_")):
            self.cls = "vmem"
            self.lds = (" lds" in " " + mods) or ("_lds_" in mn)
            if mn.startswith(("buffer_wbl2", "buffer_inv")):
                pass
            elif "load" in mn and not self.lds:
                self.wr = R[0]
                for r in R[1:]: self.rd |= r
            elif "atomic" in mn:
                for r in R: self.rd |= r
                if "sc0" in mods: self.wr = R[0]
            else:
                for r in R: self.rd |= r
                if "store" in mn and ("x4" in mn or "x3" in mn):
                    self.stdata = R[0] if mn.startswith("buffer_") else R[1]
            if self.lds: self.rd |= regs_of("m0")
        elif mn.startswith("s_"):
            self.cls = "salu"
            if mn.startswith(("s_cmp", "s_cbranch", "s_branch", "s_waitcnt", "s_barrier", "s_endpgm", "s_sleep", "s_setprio", "s_bitcmp")):
                for r in R: self.rd |= r
            else:
                if R: self.wr = set(R[0])
                for r in R[1:]: self.rd |= r
                if "saveexec" in mn: self.wr |= regs_of("exec")
        else:
            raise ValueError("unknown instruction: " + text)

def isv(rs): return {r for r in rs if r[0] in "va"}
def iss(rs): return {r for r in rs if r[0] == "s"}
EXEC = regs_of("exec")

def need(p, c):
    n = 0
    if p.cls == "valu":
        pv, ps = isv(p.wr), iss(p.wr)
        if c.cls == "mfma":
            if pv & c.rd: n = max(n, 2)
            if ps & EXEC: n = max(n, 4)
        if c.cls == "valu":
            if c.dpp and pv & c.rd: n = max(n, 2)
            if c.dpp and ps & EXEC: n = max(n, 5)
            if c.mn.startswith("v_permlane"):
                if pv & c.rd: n = max(n, 2)
                if ps & EXEC: n = max(n, 4)
            if c.mn.startswith(("v_readlane", "v_readfirstlane")) and pv & c.rd: n = max(n, 1)
            if c.mn.startswith(("v_readlane", "v_readfirstlane", "v_writelane")) and ps & EXEC: n = max(n, 4)
            if ps & c.lanesel: n = max(n, 4)
            if ps & c.rd: n = max(n, 2)
            if p.mn.startswith(TRANS) and pv & (c.rd | c.wr) : n = max(n, 1)
            if p.sdwa and pv & (c.rd | c.wr): n = max(n, 1)
        if p.mn.startswith("v_dot") and c.cls in ("valu", "vmem", "ds", "mfma") and pv & (c.rd | c.wr):
            if not (c.mn == p.mn and not (pv & c.vsrc)): n = max(n, 3)
        if c.cls == "vmem" and ps & c.rd: n = max(n, 5)
        if c.cls == "salu" and ps & c.rd: n = max(n, 1)
        if c.cls in ("vmem", "ds") and p.mn.startswith(TRANS) and pv & c.rd: n = max(n, 1)
    elif p.cls == "mfma":
        big = {4: 8, 8: 12}[p.passes]
        if c.cls == "mfma":
            if p.wr & (c.mA | c.mB): n = max(n, big)
            if p.wr & c.mC and not (p.wr == c.mC and p.passes == c.passes): n = max(n, big - 2)
            if p.wr & c.wr and not (p.wr == c.mC): n = max(n, big)
        elif c.cls in ("valu", "vmem", "ds"):
            if p.wr & (c.rd | c.wr): n = max(n, big)
            if c.cls == "valu" and p.mC & c.wr: n = max(n, {4: 3, 8: 7}[p.passes])
    elif p.cls == "salu":
        if ("s", 124) in p.wr and c.cls == "vmem" and c.lds: n = max(n, 1)
        if ("s", 124) in p.wr and c.cls == "valu" and ("s", 124) in c.rd: n = max(n, 1)
    elif p.cls == "vmem":
        if p.stdata & c.wr: n = max(n, 2)
    return n

class Asm:
    def __init__(self):
        self.lines = []
        self.hist = []
        self.nlabel = 0
    def raw(self, s):
        self.lines.append(s)
    def label(self, name):
        self.lines.append(name + ":")
    def newlabel(self, stem="L"):
        self.nlabel += 1
        return f"{stem}_{self.nlabel}"
    def __call__(self, text):
        for t in text.split("\n"):
            t = t.strip()
            if not t or t.startswith(";"):
                if t: self.lines.append("    " + t)
                continue
            if t.endswith(":"):
                self.label(t[:-1]); continue
            self.emit(t)
    def emit(self, t):
        c = Ins(t)
        dist = 0; pad = 0
        for p in reversed(self.hist):
            nd = need(p, c)
            if nd > dist: pad = max(pad, nd - dist)
            dist += p.ws
            if dist >= 20: break
        while pad > 0:
            k = min(pad, 16)
            n = Ins(f"s_nop {k-1}")
            self.lines.append("    " + n.text); self.hist.append(n); pad -= k
        self.lines.append("    " + t)
        self.hist.append(c)
        if len(self.hist) > 64: self.hist = self.hist[-32:]
    def flush(self, n=12):
        self.emit(f"s_nop {n-1}")
    def text(self):
        return "\n".join(self.lines) + "\n"

def vr(b, n=1):
    return f"v{b}" if n == 1 else f"v[{b}:{b+n-1}]"
def sr(b, n=1):
    return f"s{b}" if n == 1 else f"s[{b}:{b+n-1}]"

def kernel_header(a, name):
    a.raw(f".globl {name}"); a.raw(".p2align 8"); a.raw(f".type {name},@function"); a.raw(f"{name}:")
    a.hist = []

def kernel_desc(name, vgpr=256, sgpr=102, accum=None):
    accum = accum if accum is not None else min(256, (vgpr + 3) // 4 * 4)
    return (f".p2align 6\n.amdhsa_kernel {name}\n  .amdhsa_next_free_vgpr {vgpr}\n  .amdhsa_next_free_sgpr {sgpr}\n"
            f"  .amdhsa_accum_offset {accum}\n  .amdhsa_group_segment_fixed_size 0\n  .amdhsa_kernarg_size 88\n"
            f"  .amdhsa_user_sgpr_count 2\n  .amdhsa_user_sgpr_kernarg_segment_ptr 1\n  .amdhsa_system_sgpr_workgroup_id_x 1\n"
            f"  .amdhsa_float_denorm_mode_32 3\n  .amdhsa_float_denorm_mode_16_64 3\n.end_amdhsa_kernel\n")
```

```python
from asmlib import *
O_OFF    = 0x100000
KEY_OFF  = 0x000000
MR_OFF   = 0x004000
SEL_OFF  = 0x00A000
PART_OFF = 0x600000
STAMP_OFF = 0x900000
WS_SIZE  = 0x1000000

class LQ:
    def __init__(self, a, name, cap):
        self.a, self.name, self.cap, self.q = a, name, cap, []
    def add(self, tag):
        self.q.append(tag)
    def wait(self, *tags):
        idx = -1
        for i, t in enumerate(self.q):
            if t in tags: idx = i
        if idx < 0: return
        n = len(self.q) - 1 - idx
        n = min(n, self.cap)
        self.a(f"s_waitcnt {self.name}({n})")
        self.q = self.q[len(self.q) - n:] if n else []
    def waitall(self):
        self.a(f"s_waitcnt {self.name}(0)"); self.q = []

def srd(a, d, lo, size):
    a(f"s_mov_b32 s{d}, s{lo}\ns_mov_b32 s{d+1}, s{lo+1}\ns_mov_b32 s{d+2}, {size:#x}\ns_mov_b32 s{d+3}, 0x20000")

def w_dma_laneoff(a, vdst, vlane, vt1, vt2, rowstride_s, k2perm):
    a(f"v_lshrrev_b32 v{vt1}, 3, v{vlane}")
    a(f"v_and_b32 v{vt2}, 6, v{vt1}")
    a(f"v_and_b32 v{vdst}, 7, v{vlane}")
    a(f"v_xor_b32 v{vdst}, v{vdst}, v{vt2}")
    a(f"v_lshlrev_b32 v{vdst}, 4, v{vdst}")
    if k2perm:
        a(f"v_and_b32 v{vt2}, 4, v{vt1}")
        a(f"v_add_u32 v{vt1}, v{vt1}, v{vt2}")
    a(f"v_mul_lo_u32 v{vt1}, v{vt1}, s{rowstride_s}")
    a(f"v_add_u32 v{vdst}, v{vdst}, v{vt1}")

def w_tr_laneaddr(a, vdst, vlane, vt1, vt2, u_imm, hi_stride, u_sreg=None):
    a(f"v_bfe_u32 v{vt1}, v{vlane}, 2, 3")
    a(f"v_lshrrev_b32 v{vt2}, 1, v{vt1}")
    if u_sreg is not None:
        a(f"v_xor_b32 v{vt2}, s{u_sreg}, v{vt2}")
    else:
        a(f"v_xor_b32 v{vt2}, {u_imm}, v{vt2}")
    a(f"v_lshlrev_b32 v{vdst}, 5, v{vt2}")
    a(f"v_lshl_add_u32 v{vdst}, v{vt1}, 7, v{vdst}")
    a(f"v_and_b32 v{vt1}, 3, v{vlane}")
    a(f"v_lshl_add_u32 v{vdst}, v{vt1}, 3, v{vdst}")
    a(f"v_lshrrev_b32 v{vt1}, 5, v{vlane}")
    sh = hi_stride.bit_length() - 1
    a(f"v_lshl_add_u32 v{vdst}, v{vt1}, {sh}, v{vdst}")
```

```python
from common import *
from stats import stats_loads, stats_compute, stats_fast

SLOT = 49152
MISC = 3 * SLOT
O_EPI = 56
O_FULL, O_ISS, O_ARR, O_WO, O_GO, O_HELP, O_STATRDY, O_XF = 0, 16, 20, 24, 28, 32, 36, 40
L_ONES = MISC + 64
O_SEL = 256
L_M = MISC + 1536
L_MRI = MISC + 3072
L_CS = MISC + 4608
L_XCH = MISC + 5632
L_UPD = MISC + 9728
L_DUMMY = L_UPD + 9 * 256
F_LDS = L_DUMMY + 2112
M_SH = 131072
M_CAND = M_SH
M_H = M_SH + 256
OFLAG_OFF = 0x10000
PFLAG_OFF = OFLAG_OFF + 192 * 128
SFLAG_OFF = OFLAG_OFF + 256 * 128
NEG_BIG = 0xf149f2ca
SM_C = 0x3e8293ee
DPP = "row_mask:0xf bank_mask:0xf"
POLL_MAX = 0x8000
QA = [[4, 3, 7, 1], [2, 5, 0, 4], [5, 0, 2, 6], [1, 6, 3, 5], [0, 2, 4, 7], [3, 7, 5, 2]]
QB = [[6, 1, 4, 3], [1, 3, 5, 7], [7, 4, 2, 1], [3, 5, 6, 0], [0, 7, 3, 5], [4, 2, 0, 6]]
TOPWG = 252
M_GM = M_SH + 512
M_C2 = M_SH + 1024

class Gen:
    def __init__(self, a, name, stamps=False, G=8, ra=2, rb_=3, order=None, hpoll=10, nomoe=False, codepf=False, c3pf=False, sparepf=True, dry=False, osleep=8, pace=None, qtab=True, w3pf=True, epiw=False, ofl='sc1', wogate=0, mallpf=True, xsh=0, ldg=4, agg=True, ldp=2, zl=False, x5=True, tlb=0, swp=0, pmask=True, psl=24, fw=0, zf=True, zg=False, pm=0, stfl='sc1', sp2=False, sp3=True, notouch=0, n0=8, snt=False, lal=None, mp=3, fb2=False, msl=8, hg2=False, gk=1, tu=7, x4=True, cbs=True, tb=4, i2e=4, fl128=False, wfirst=0, hgate=1, sp1=True, npoll=1, wsh=True, p2loop=False, p2v=2, spread=True, la=2, bigt=0, d0=4, wok=10, ew=True, t3=True, tk=(2, 4, 6), wo14=True, bar=(1, 1), wo2=False, sgate=False, mdelay=0, htouch=None, fine=True, probe=None, early=False, prew=0, prewat=3, r2pf=None, rounds=None, moent='nt', codetop=False, pollfl='sc1', xfl='', wfl='', rfl='', p2i=0, p2p=0, fst=0, fai=0, own=0, cop=None, upf=0, ch=0, chb=0):
        self.ch, self.chb = ch, chb
        self.cop, self.upf = cop, upf
        self.own = own
        self.fst, self.fai = fst, fai
        self.p2i, self.p2p = p2i, p2p
        self.a, self.name, self.stamps = a, name, stamps
        self.G, self.ra, self.rb_, self.order, self.hpoll, self.nomoe = G, ra, rb_, order, hpoll, nomoe
        self.END = name + "_end"
        self.early, self.prew, self.prewat = early, prew, prewat
        self.sp2, self.sp3, self.notouch = sp2, sp3, notouch
        if notouch & 1: ew, tb, wok = False, 99, 99
        if notouch & 2: gk, tu, d0 = 99, 98, 99
        self.pm, self.stfl, self.fw, self.zf, self.zg = pm, stfl, fw, zf, zg
        self.ldg, self.agg, self.ldp = ldg, agg, ldp
        self.zl, self.x5 = zl, x5
        self.swp, self.tlb = swp, tlb
        self.pmask, self.psl = pmask, psl
        self.fb2, self.n0 = fb2, n0
        self.c1 = 4 * n0
        self.lal, self.snt = lal, snt
        self.mp, self.msl = mp, msl
        self.hg2, self.gk = hg2, gk
        self.tb, self.tu, self.cbs, self.x4 = tb, tu, cbs, x4
        self.fl128, self.i2e = fl128, i2e
        self.sp1, self.wfirst, self.hgate = sp1, wfirst, hgate
        self.la, self.npoll, self.wsh = la, npoll, wsh
        self.bigt, self.p2loop, self.p2v, self.spread = bigt, p2loop, p2v, spread
        self.t3, self.d0, self.wok, self.ew = t3, d0, wok, ew
        self.bar, self.tk, self.wo14 = bar, tk, wo14
        self.wo2, self.sgate = wo2, sgate
        self.htouch, self.mdelay = htouch, mdelay
        self.fine, self.mallpf, self.xsh = fine, mallpf, xsh
        self.probe, self.ofl, self.wogate = probe, ofl, wogate
        self.rounds, self.r2pf = rounds, r2pf
        self.qtab, self.w3pf, self.moent, self.codetop = qtab, w3pf, moent, codetop
        self.epiw, self.pollfl, self.xfl, self.wfl, self.rfl = epiw, pollfl, xfl, wfl, rfl
        self.dry, self.osleep, self.pace = dry, osleep, pace
        self.codepf, self.c3pf, self.sparepf = codepf, c3pf, sparepf
    def L(self, s): return f"{self.name}_{s}"
    def stamp(self, k):
        if self.stamps:
            self.a(f"s_memrealtime s[98:99]\ns_waitcnt lgkmcnt(0)\ns_mov_b32 s{88+k}, s98")
    def finish(self):
        a = self.a
        if self.stamps:
            a(f"s_branch {self.L('fin')}")
        else:
            a("s_endpgm")
        a.hist = []
    def spin(self, off, vtmp, stmp, cond, sleep=0, vaddr=1):
        a = self.a
        L = a.newlabel(self.name + "_sp")
        if sleep: a(f"s_branch {L}_e\n{L}:\ns_sleep {sleep}\n{L}_e:")
        else: a(f"{L}:")
        a(f"ds_read_b32 v{vtmp}, v{vaddr} offset:{off}\ns_waitcnt lgkmcnt(0)")
        a(f"v_readfirstlane_b32 s{stmp}, v{vtmp}\n{cond[0]} s{stmp}, {cond[1]}\ns_cbranch_scc0 {L}")
    def gpoll(self, load, vdst, cmp, scnt, sleep, preloaded=False, diag=False):
        a = self.a
        PL, PC, PD = a.newlabel(self.name + "_pl"), a.newlabel(self.name + "_pc"), a.newlabel(self.name + "_pd")
        a(f"s_mov_b32 s{scnt}, 0")
        if preloaded: a(f"s_branch {PC}")
        a(f"{PL}:\n{load}\ns_waitcnt vmcnt(0)")
        a(f"{PC}:\n{cmp}\ns_cmp_eq_u64 vcc, -1\ns_cbranch_scc1 {PD}")
        if diag and self.stamps:
            a(f"s_not_b32 s90, vcc_lo\ns_mov_b32 s91, s{scnt}\ns_mov_b32 s93, s92")
            self.stamp(4)
        a(f"s_add_u32 s{scnt}, s{scnt}, 1\ns_cmp_lt_u32 s{scnt}, {POLL_MAX:#x}\ns_cbranch_scc0 {PD}\ns_sleep {sleep}\ns_branch {PL}")
        a(f"{PD}:")
    def pl(self, vd, va, srd_, off=0):
        o = f" offset:{off}" if off else ""
        if self.pm == 1: return f"v_mov_b32 v{vd}, 0\nbuffer_atomic_or v{vd}, v{va}, {srd_}, 0 offen{o} sc0 sc1"
        return f"buffer_load_dword v{vd}, v{va}, {srd_}, 0 offen{o} {self.pollfl}"
    def p2decode(self):
        a = self.a
        a("s_and_b32 s30, s28, 1\ns_lshl_b32 s30, s30, 3\ns_and_b32 s31, s28, 2\ns_lshl_b32 s31, s31, 1\ns_add_u32 s30, s30, s31\ns_lshr_b32 s31, s29, 3\ns_add_u32 s30, s30, s31")
        a("s_and_b32 s34, s29, 7")
        if self.cbs:
            a("s_add_u32 s32, s28, 3\ns_and_b32 s32, s32, 7\ns_cmp_eq_u32 s29, 27\ns_cselect_b32 s34, s32, s34\ns_add_u32 s32, s32, 24\ns_cmp_eq_u32 s29, s32\ns_cselect_b32 s34, 3, s34")
        a("s_and_b32 s32, s28, 4\ns_lshl_b32 s32, s32, 1\ns_add_u32 s32, s32, s34")
    def opoll(self, full, done):
        a = self.a
        a("s_lshl_b32 s49, s30, 3\ns_mul_i32 s50, s49, 187\ns_lshr_b32 s50, s50, 11\ns_add_u32 s49, s49, 7\ns_mul_i32 s49, s49, 187\ns_lshr_b32 s49, s49, 11")
        a("v_mov_b32 v16, s50\nv_mov_b32 v17, s49\nv_cmp_gt_u32 vcc, 16, v0\nv_cndmask_b32 v16, v17, v16, vcc\nv_and_b32 v17, 15, v0\nv_lshlrev_b32 v17, 7, v17")
        a(f"v_lshl_add_u32 v8, v16, 11, v17\nv_add_u32 v8, {OFLAG_OFF:#x}, v8\ns_mov_b32 s49, 0\ns_mov_b32 exec_hi, 0\ns_mov_b32 s52, -1\ns_mov_b32 s53, 0")
        OP, OS, NX = a.newlabel("F_opl"), a.newlabel("F_ops"), a.newlabel("F_opn")
        a(f"{OP}:\n{self.pl(16, 8, 's[20:23]')}\ns_add_u32 s49, s49, 1\ns_waitcnt vmcnt(0)\nv_cmp_ne_u32 vcc, 0, v16")
        a("s_or_b32 s53, s53, vcc_lo")
        a(f"s_cmp_lt_u32 s49, {POLL_MAX:#x}\ns_cselect_b32 s50, s53, s52\ns_mov_b32 exec_lo, 1\nv_mov_b32 v17, s50\nds_or_b32 v1, v17 offset:{O_GO}")
        a(f"s_cmp_eq_u32 s50, s52\ns_cbranch_scc1 {done}")
        if not full:
            a(f"s_cmp_eq_u32 s50, 0\ns_cbranch_scc1 {NX}\nds_read_b32 v17, v1 offset:{O_EPI}\ns_waitcnt lgkmcnt(0)\nv_readfirstlane_b32 s51, v17\ns_cmp_ge_u32 s51, 4\ns_cbranch_scc1 {done}\n{NX}:")
        a(f"s_not_b32 exec_lo, s53\ns_cmp_eq_u32 s53, 0\ns_cbranch_scc0 {OS}\ns_sleep 12\n{OS}:\ns_sleep {self.osleep}\ns_branch {OP}")
    def parrive(self):
        a = self.a
        N = a.newlabel("F_npa")
        a(f"s_cmp_eq_u32 s56, 0\ns_cbranch_scc1 {N}\nv_mov_b32 v16, 1\nv_mov_b32 v17, s56\ns_mov_b64 exec, 1\nds_add_rtn_u32 v18, v1, v16 offset:{O_ARR}\ns_waitcnt lgkmcnt(0)")
        a(f"v_readfirstlane_b32 s49, v18\ns_cmp_lg_u32 s49, 7\ns_cbranch_scc1 {N}\nbuffer_store_dword v16, v17, s[20:23], 0 offen sc1\n{N}:\ns_mov_b64 exec, -1")
    def wo_touch_addr(self, v, t):
        a = self.a
        a(f"v_lshrrev_b32 v{v}, 3, v0\nv_lshlrev_b32 v{v}, 11, v{v}\nv_and_b32 v{t}, 7, v0\nv_lshl_add_u32 v{v}, v{t}, 7, v{v}")
        a(f"s_and_b32 s36, s28, 4\ns_lshl_b32 s36, s36, 8\nv_add_u32 v{v}, s36, v{v}")

    def gen(self):
        a, L = self.a, self.L
        kernel_header(a, self.name)
        a(f"s_cmp_ge_u32 s2, 256\ns_cbranch_scc1 {self.END}")
        a("s_load_dwordx4 s[4:7], s[0:1], 0")
        a("s_load_dwordx4 s[72:75], s[0:1], 72")
        a("s_load_dwordx2 s[84:85], s[0:1], 16")
        a("s_load_dwordx2 s[86:87], s[0:1], 64")
        if self.stamps:
            a("s_memrealtime s[88:89]")
            for k in range(2, 10): a(f"s_mov_b32 s{88+k}, 0")
        a("v_lshrrev_b32 v1, 6, v0\nv_and_b32 v0, 63, v0")
        a("v_readfirstlane_b32 s3, v1")
        a("s_and_b32 s28, s2, 7\ns_lshr_b32 s29, s2, 3\ns_mov_b32 s39, 0xffff0000")
        if self.stamps: a("s_mov_b32 s100, s3")
        if self.codetop:
            a(f"s_cmp_lg_u32 s29, 31\ns_cbranch_scc1 {L('nct')}\ns_getpc_b64 s[8:9]\n{L('pc0')}:")
            a(f"s_sub_u32 s8, s8, {L('pc0')}-{KNAME}\ns_subb_u32 s9, s9, 0\ns_mov_b32 s10, {L('end')}-{KNAME}\ns_mov_b32 s11, 0x20000")
            a(f"v_lshlrev_b32 v5, 6, v0\ns_lshl_b32 s36, s3, 12\nbuffer_load_dword v255, v5, s[8:11], s36 offen\n{L('nct')}:")
        a(f"s_cmp_ge_u32 s29, 24\ns_cbranch_scc1 {L('moe')}")
        a("s_mul_i32 s31, s29, 43\ns_lshr_b32 s31, s31, 8")
        a("s_mul_i32 s30, s31, 6\ns_sub_u32 s30, s29, s30")
        a("s_and_b32 s32, s28, 1\ns_mul_i32 s32, s32, 6\ns_add_u32 s30, s30, s32")
        a("s_lshr_b32 s32, s28, 1\ns_lshl_b32 s32, s32, 2\ns_add_u32 s31, s31, s32")
        a("s_mul_i32 s33, s30, 176\ns_sub_u32 s33, s33, 16")
        a(f"v_mov_b32 v1, {MISC}\ns_mov_b32 s56, 0")
        a(f"s_cmp_lt_u32 s3, 4\ns_cbranch_scc1 {L('cons')}")
        self.loader()
        self.p2()
        self.cons()
        self.help2()
        self.moe()
        if self.stamps:
            a(f"{L('fin')}:")
            a("s_mov_b64 exec, -1\ns_waitcnt vmcnt(0)")
            self.stamp(1)
            if self.probe:
                (w0, w1), (v0, v1), k, mul = self.probe
                a(f"s_cmp_lt_u32 s2, {w0}\ns_cbranch_scc1 {self.END}\ns_cmp_gt_u32 s2, {w1}\ns_cbranch_scc1 {self.END}\ns_cmp_lt_u32 s100, {v0}\ns_cbranch_scc1 {self.END}\ns_cmp_gt_u32 s100, {v1}\ns_cbranch_scc1 {self.END}")
                a(f"s_sub_u32 s49, s{88+k}, s88\ns_mul_i32 s49, s49, {mul}\ns_add_u32 s49, s49, 10000\ns_sleep 127\ns_sleep 127\ns_sleep 127\ns_sleep 127")
                a(f"F_prb:\ns_sleep 8\ns_memrealtime s[98:99]\ns_waitcnt lgkmcnt(0)\ns_sub_u32 s50, s98, s88\ns_cmp_lt_u32 s50, s49\ns_cbranch_scc1 F_prb\ns_endpgm")
            srd(a, 20, 74, WS_SIZE)
            a(f"s_lshl_b32 s49, s2, 9\ns_lshl_b32 s50, s100, 6\ns_add_u32 s49, s49, s50\ns_add_u32 s49, s49, {STAMP_OFF:#x}\nv_mov_b32 v2, s49")
            for k in range(10): a(f"v_mov_b32 v{4+k}, s{88+k}")
            a("buffer_store_dwordx4 v[4:7], v2, s[20:23], 0 offen\nbuffer_store_dwordx4 v[8:11], v2, s[20:23], 0 offen offset:16\nbuffer_store_dwordx2 v[12:13], v2, s[20:23], 0 offen offset:32")
        a(f"{self.END}:\ns_endpgm")

    def statdma(self, sel=True):
        a = self.a
        a(f"s_mov_b32 s46, {MR_OFF:#x}\ns_mov_b32 s47, {MR_OFF+4:#x}")
        for i in range(3):
            a(f"s_mov_b32 m0, {L_M+256*i}\nbuffer_load_dword v{24+i}, s[20:23], s46 offen sc1 lds")
            a(f"s_mov_b32 m0, {L_M+768+256*i}\nbuffer_load_dword v{24+i}, s[20:23], s47 offen sc1 lds")
        for i in range(6):
            a(f"s_mov_b32 m0, {L_MRI+256*i}\nbuffer_load_dword v{36+i}, s[20:23], s46 offen sc1 lds")
        if sel: a(f"s_mov_b32 m0, {MISC+O_SEL}\ns_mov_b32 s46, 128\nbuffer_load_dword v27, s[24:27], s46 offen sc1 lds")

    def loader(self):
        a, L = self.a, self.L
        a("s_sub_u32 s3, s3, 4\ns_mul_i32 s45, s3, 12288")
        a(f"s_cmp_ge_u32 s3, 2\ns_cbranch_scc1 {L('lw')}")
        a("v_lshrrev_b32 v16, 3, v0\nv_lshrrev_b32 v17, 4, v0\nv_and_b32 v18, 7, v0\nv_xor_b32 v17, v17, v18\nv_lshlrev_b32 v17, 4, v17")
        a("v_xor_b32 v18, 64, v17\ns_mul_i32 s36, s3, 96\ns_add_u32 s36, s36, s33\nv_add_u32 v16, s36, v16")
        for p in range(12):
            if p < 2: a(f"v_add_u32 v19, {8*p}, v16\nv_max_i32 v19, 0, v19\nv_lshl_add_u32 v{2+p}, v19, 11, v{17+(p&1)}\nv_add_u32 v{2+p}, {4096-1024*(p&3)}, v{2+p}")
            elif p < 4: a(f"v_lshl_add_u32 v{2+p}, v16, 11, v{17+(p&1)}\nv_add_u32 v{2+p}, {p*16384+4096-1024*(p&3)}, v{2+p}")
            else: a(f"v_add_u32 v{2+p}, {(p-2-(p&1))*16384-1024*((p&3)-2-(p&1))}, v{4+(p&1)}")
        a("s_mov_b32 s42, 128\ns_waitcnt lgkmcnt(0)")
        a(f"s_sub_u32 s12, s4, 0x1000\ns_subb_u32 s13, s5, 0\ns_mov_b32 s14, 0x401000\ns_mov_b32 s15, 0x20000\ns_branch {L('lgo')}")
        a(f"{L('lw')}:\ns_mov_b32 s36, 6144")
        w_dma_laneoff(a, 2, 0, 16, 17, 36, True)
        a(f"s_lshl_b32 s36, s31, 7\ns_cmp_eq_u32 s3, 3\ns_cselect_b32 s37, {2048+32*6144}, 0\ns_add_u32 s36, s36, s37\nv_add_u32 v2, s36, v2")
        a(f"s_cmp_eq_u32 s3, 3\ns_mov_b32 s36, {32*6144}\ns_cselect_b32 s36, {2048-32*6144}, s36")
        for q in range(1, 4): a(f"v_add_u32 v{2+q}, {(0,4,16,20)[q]*6144 - 1024*q}, v2")
        for q in range(4): a(f"v_add_u32 v{6+q}, s36, v{2+q}\nv_add_u32 v{10+q}, 2048, v{2+q}")
        a("s_mov_b32 s42, 393216\ns_waitcnt lgkmcnt(0)")
        srd(a, 12, 6, 0x600000)
        a(f"{L('lgo')}:\ns_mov_b32 s43, 0\ns_mov_b32 s40, s45")
        def issue():
            for g in range(3):
                a(f"s_add_u32 m0, s40, {g*4096}")
                for q in range(4): a(f"buffer_load_dwordx4 v{2+4*g+q}, s[12:15], s43 offen offset:{1024*q} lds")
            a(f"s_add_u32 s43, s43, s42\ns_add_u32 s40, s40, {SLOT}\ns_cmp_ge_u32 s40, {3*SLOT}\ns_cselect_b32 s40, s45, s40")
        issue(); issue()
        D0, P = self.d0, self.hpoll
        a("s_load_dwordx4 s[64:67], s[0:1], 40\ns_mov_b32 s61, 0\ns_mov_b32 s59, 0\ns_mov_b32 s11, 0x20000")
        a(f"s_cmp_eq_u32 s3, 1\ns_cbranch_scc1 {L('r1')}\ns_cmp_eq_u32 s3, 2\ns_cbranch_scc1 {L('r2')}\ns_cmp_eq_u32 s3, 3\ns_cbranch_scc1 {L('r3')}")
        a(f"s_lshl_b32 s36, s29, 14\ns_lshr_b32 s37, s28, 1\ns_lshl_b32 s37, s37, 9\ns_add_u32 s36, s36, s37\ns_add_u32 s36, s36, {D0*393216+384}\nv_lshl_add_u32 v21, v0, 11, s36")
        a(f"s_bitcmp1_b32 s28, 1\ns_cselect_b32 s58, 0, {7*393216 if self.bigt else 0x600000}\ns_mov_b64 s[62:63], 0xff\ns_mov_b32 s60, 393216\ns_mov_b32 s8, s6\ns_mov_b32 s9, s7\ns_branch {L('rd0')}")
        a(f"{L('r1')}:")
        self.wo_touch_addr(21, 17)
        a(f"s_lshl_b32 s36, s29, 2\ns_and_b32 s37, s28, 3\ns_add_u32 s36, s36, s37\ns_lshl_b32 s36, s36, 14\nv_add_u32 v21, s36, v21")
        a(f"s_mov_b64 s[62:63], -1\ns_mov_b32 s60, 0x200000\ns_mov_b32 s58, 0x200000\ns_mov_b32 s59, {self.wok}\ns_mov_b32 s8, s84\ns_mov_b32 s9, s85\ns_branch {L('rd0')}")
        a(f"{L('r2')}:\ns_add_u32 s37, s28, 3\ns_and_b32 s37, s37, 7\n" + (f"s_min_u32 s37, s37, 6\ns_mov_b32 s58, {1024*7168}" if self.x4 else f"s_cmp_eq_u32 s37, 7\ns_cselect_b32 s58, 0, {1024*7168}") + f"\ns_mul_i32 s38, s28, 7\ns_add_u32 s37, s37, s38\ns_lshl_b32 s37, s37, 7")
        if self.tu:
            a(f"s_mul_i32 s38, s29, {44*7168}\ns_add_u32 s37, s37, s38\ns_mov_b32 s38, 7168\nv_mul_lo_u32 v21, v0, s38\nv_add_u32 v21, s37, v21\ns_mov_b32 s62, -1\ns_mov_b32 s63, 0xfff\ns_mov_b32 s60, {1024*7168}\ns_mov_b32 s59, {self.gk}")
        else:
            a(f"s_mul_i32 s38, s29, {22*7168}\ns_add_u32 s37, s37, s38\ns_mov_b32 s38, 7168\nv_mul_lo_u32 v21, v0, s38\nv_add_u32 v21, s37, v21\ns_mov_b32 s62, 0x3fffff\ns_mov_b32 s63, 0\ns_mov_b32 s60, {528*7168}\ns_mov_b32 s59, 1")
        a(f"s_waitcnt lgkmcnt(0)\ns_mov_b32 s8, s64\ns_mov_b32 s9, s65\ns_branch {L('rd0')}")
        a(f"{L('r3')}:\nv_and_b32 v21, 7, v0\nv_lshlrev_b32 v21, 2, v21\nv_add_u32 v21, 128, v21\ns_mov_b64 s[62:63], -1\ns_mov_b32 s60, 0\ns_mov_b32 s58, 0x100\ns_mov_b32 s59, {P}\ns_mov_b32 s8, s72\ns_mov_b32 s9, s73")
        a(f"{L('rd0')}:\ns_mov_b32 s41, 0\ns_mov_b32 s44, 0\nv_mov_b32 v28, 0\ns_waitcnt vmcnt(12) lgkmcnt(0)\ns_barrier")
        def side():
            a("s_cmp_ge_u32 s44, s59\ns_cselect_b32 s10, s58, 0\ns_cselect_b32 s36, s60, 0\ns_mov_b64 exec, s[62:63]")
            if self.snt:
                A, B = a.newlabel("F_sn"), a.newlabel("F_sm")
                a(f"s_cmp_eq_u32 s3, 2\ns_cbranch_scc1 {A}\nbuffer_load_dword v28, v21, s[8:11], 0 offen sc1\ns_branch {B}\n{A}:\nbuffer_load_dword v28, v21, s[8:11], 0 offen nt\n{B}:")
            else: a(f"buffer_load_dword v28, v21, s[8:11], 0 offen {self.pollfl}")
            a("s_mov_b64 exec, -1\nv_add_u32 v21, s36, v21")
        issue(); side()
        srd(a, 20, 74, WS_SIZE); srd(a, 24, 72, 0x100)
        for i in range(3):
            a(f"v_add_u32 v{24+i}, s33, v0\nv_add_u32 v{24+i}, {64*i}, v{24+i}\nv_max_i32 v{24+i}, 0, v{24+i}\nv_min_i32 v{24+i}, 0x7ff, v{24+i}\nv_lshlrev_b32 v{24+i}, 3, v{24+i}")
        a("v_lshrrev_b32 v16, 1, v0\nv_add_u32 v16, s33, v16")
        for i in range(6):
            a(f"v_add_u32 v{36+i}, {32*i}, v16\nv_max_i32 v{36+i}, 0, v{36+i}\nv_min_i32 v{36+i}, 0x7ff, v{36+i}\nv_lshlrev_b32 v{36+i}, 3, v{36+i}")
        a("v_and_b32 v27, 7, v0\nv_lshlrev_b32 v27, 2, v27\ns_cmp_lg_u32 s3, 3\ns_cselect_b32 s41, 1, 0")
        if self.tb or self.tu:
            srd(a, 16, 6, 0x600000)
            a(f"s_lshl_b32 s36, s29, 1\ns_and_b32 s37, s28, 1\ns_add_u32 s36, s36, s37\ns_lshl_b32 s36, s36, 15\ns_lshr_b32 s37, s28, 1\ns_lshl_b32 s37, s37, 9\ns_add_u32 s36, s36, s37\ns_add_u32 s36, s36, {393216+2*(self.c1+8)*32768}")
            a("v_lshrrev_b32 v22, 2, v0\nv_lshlrev_b32 v22, 11, v22\nv_and_b32 v17, 3, v0\nv_lshl_add_u32 v22, v17, 7, v22\nv_add_u32 v22, s36, v22")
            a(f"s_cmp_eq_u32 s3, 1\ns_cselect_b32 s68, {self.tb or -1}, -1")
            if self.tu:
                a(f"s_cmp_lg_u32 s3, 2\ns_cbranch_scc1 {L('nup')}\ns_mov_b32 s68, {self.tu}\ns_mov_b32 s16, s66\ns_mov_b32 s17, s67\ns_mov_b32 s18, s58\n{'v_mov_b32 v22, v21' if self.gk else 'v_subrev_u32 v22, s60, v21'}\n{L('nup')}:")
        if self.tlb:
            a("s_mov_b32 s69, s30\ns_mov_b32 s70, s31")
            self.p2decode()
            a(f"s_cmp_lg_u32 s3, 0\ns_cbranch_scc1 {L('tl3')}\ns_mov_b32 s68, {self.tlb}\ns_mov_b32 s16, s74\ns_mov_b32 s17, s75\ns_mov_b32 s18, {WS_SIZE:#x}")
            a(f"s_mul_i32 s36, s69, {11*32768}\ns_lshl_b32 s37, s70, 11\ns_add_u32 s36, s36, s37\ns_add_u32 s36, s36, {O_OFF:#x}\ns_lshl_b32 s37, s30, 18\ns_add_u32 s37, s37, {O_OFF-4*65536:#x}")
            a(f"v_mul_u32_u24 v22, {3*32768+10923}, v0\nv_and_b32 v22, 0xffff8000, v22\nv_add_u32 v22, s36, v22\nv_lshl_add_u32 v17, v0, 16, s37\nv_cmp_gt_u32 vcc, 4, v0\nv_cndmask_b32 v22, v17, v22, vcc")
            a(f"{L('tl3')}:\ns_cmp_lg_u32 s3, 3\ns_cbranch_scc1 {L('tl4')}\ns_mov_b32 s68, {self.tlb}\ns_mov_b32 s16, s86\ns_mov_b32 s17, s87\ns_mov_b32 s18, 0x400000")
            a(f"s_lshl_b32 s36, s30, 18\ns_lshl_b32 s37, s32, 7\ns_add_u32 s36, s36, s37\nv_and_b32 v22, 3, v0\nv_lshl_add_u32 v22, v22, 16, s36\n{L('tl4')}:\ns_mov_b32 s30, s69\ns_mov_b32 s31, s70")
        if self.bigt:
            srd(a, 16, 6, 0x600000)
            a(f"s_mul_i32 s36, s3, 24\ns_add_u32 s36, s36, s29\ns_lshl_b32 s36, s36, 1\ns_and_b32 s37, s28, 1\ns_add_u32 s38, s36, s37\ns_xor_b32 s37, s38, 1\ns_mul_i32 s38, s38, {10*2048}\ns_mul_i32 s37, s37, {10*2048}")
            a(f"s_lshr_b32 s36, s28, 1\ns_lshl_b32 s36, s36, 9\ns_add_u32 s36, s36, {1216*2048}\ns_add_u32 s38, s38, s36\ns_add_u32 s37, s37, s36\ns_add_u32 s37, s37, {384-40*2048}")
            a("v_lshrrev_b32 v22, 2, v0\nv_lshlrev_b32 v22, 11, v22\nv_and_b32 v17, 3, v0\nv_lshl_add_u32 v22, v17, 7, v22\nv_add_u32 v22, s38, v22\nv_lshl_add_u32 v17, v0, 11, s37\nv_cmp_gt_u32 vcc, 40, v0\nv_cndmask_b32 v22, v17, v22, vcc")
            a("s_bitcmp1_b32 s28, 1\ns_mov_b32 s66, 0x3ffff\ns_cselect_b32 s66, 0xff, s66")
        a("s_waitcnt vmcnt(13)")
        LL = L("ll")
        def lst(idx):
            if self.stamps: a(f"s_memrealtime s[98:99]\ns_waitcnt lgkmcnt(0)\ns_mov_b32 m0, {idx}\nv_writelane_b32 v30, s98, m0")
        if self.stamps: a("v_mov_b32 v30, 0")
        a(f"{LL}:")
        if self.stamps: a("s_add_u32 s57, s44, 32"); lst("s57")
        a("s_barrier")
        lst("s44")
        issue()
        a(f"s_add_u32 s44, s44, 1\ns_cmp_lg_u32 s41, 0\ns_cbranch_scc1 {L('lsd')}\nv_cmp_ne_u32 vcc, 0, v28\ns_cmp_eq_u64 vcc, -1\ns_cbranch_scc0 {L('lsd')}")
        self.statdma()
        a(f"s_mov_b32 s41, 1\ns_mov_b32 s58, 0\ns_waitcnt vmcnt(26)\ns_branch {L('lnx')}")
        a(f"{L('lsd')}:")
        if self.tb or self.tu:
            a(f"s_cmp_lg_u32 s44, s68\ns_cbranch_scc1 {L('lsd2')}\ns_mov_b64 exec, s[62:63]\n" + (f"s_cmp_eq_u32 s3, 2\ns_cbranch_scc1 {L('an')}\nbuffer_load_dword v20, v22, s[16:19], 0 offen\ns_branch {L('am')}\n{L('an')}:\nbuffer_load_dword v20, v22, s[16:19], 0 offen nt\n{L('am')}:" if self.snt else "buffer_load_dword v20, v22, s[16:19], 0 offen") + f"\ns_mov_b64 exec, -1\ns_waitcnt vmcnt(14)\ns_branch {L('lnx')}\n{L('lsd2')}:")
        if self.bigt:
            a(f"s_cmp_lg_u32 s44, {self.bigt}\ns_cbranch_scc1 {L('lsd2')}\ns_mov_b32 exec_hi, s66\nbuffer_load_dword v20, v22, s[16:19], 0 offen\ns_mov_b32 exec_hi, -1\ns_waitcnt vmcnt(14)\ns_branch {L('lnx')}\n{L('lsd2')}:")
        side()
        a("s_waitcnt vmcnt(14)")
        a(f"{L('lnx')}:\ns_cmp_lt_u32 s44, 13\ns_cbranch_scc1 {LL}")
        self.p2decode()
        self.woaddr()
        lst(45)
        a("s_barrier")
        lst(13)
        self.wopart(48, 3)
        a("s_waitcnt vmcnt(12)")
        lst(46)
        a("s_barrier")
        lst(14)
        self.wopart(96, 3 if self.wsh else 2)
        lst(47)
        a("s_barrier")
        lst(15)
        if self.stamps:
            a(f"s_lshl_b32 s49, s2, 10\ns_lshl_b32 s50, s3, 8\ns_add_u32 s49, s49, s50\ns_add_u32 s49, s49, {STAMP_OFF+0x40000:#x}\nv_lshl_add_u32 v31, v0, 2, s49\nbuffer_store_dword v30, v31, s[20:23], 0 offen")
        a(f"s_cmp_lg_u32 s41, 0\ns_cbranch_scc1 {L('p2g')}")
        self.gpoll("buffer_load_dword v28, v27, s[24:27], 0 offen offset:128 sc1", 28, "v_cmp_ne_u32 vcc, 0, v28", 47, 8)
        self.statdma(False)
        a(f"v_or_b32 v28, 0x800, v28\nv_add_u32 v16, v27, v1\ns_waitcnt vmcnt(0)\nds_write_b32 v16, v28 offset:{O_SEL}")
        a(f"{L('p2g')}:\ns_mov_b32 s59, 0\ns_branch {L('p2c')}")

    def woaddr(self, v=220):
        a = self.a
        a("s_mov_b32 s36, 2048")
        w_dma_laneoff(a, v, 0, 14, 15, 36, False)
        a(f"s_lshl_b32 s36, s32, 7\nv_add_u32 v{v}, s36, v{v}")
        for q in range(1, 4): a(f"v_add_u32 v{v+q}, {q*(16384-1024)}, v{v}")
        srd(a, 12, 84, 0x200000)
    def wopart(self, p0, n4, v=220):
        a = self.a
        a(f"s_mul_i32 s49, s3, {4096*n4}\ns_lshl_b32 s38, s49, 4\ns_add_u32 s49, s49, {p0*1024}\ns_add_u32 s38, s38, {((p0-48)%128)*16384}")
        for g in range(n4):
            a(f"s_add_u32 m0, s49, {g*4096}")
            if g: a("s_add_u32 s38, s38, 0x10000")
            for q in range(4): a(f"buffer_load_dwordx4 v{v+q}, s[12:15], s38 offen offset:{q*1024} lds")

    def p2a(self, wait):
        a = self.a
        XR, MRR, vO0, vO1, vX, vMR = 200, 216, 4, 5, 6, 7
        srd(a, 8, 4, 0x400000); srd(a, 16, 86, 0x400000); srd(a, 20, 74, WS_SIZE)
        a("s_lshl_b32 s35, s30, 7\ns_lshl_b32 s36, s3, 5\ns_add_u32 s35, s35, s36")
        a("v_and_b32 v14, 15, v0\nv_add_u32 v14, s35, v14")
        a(f"v_lshlrev_b32 v{vMR}, 3, v14\nv_add_u32 v{vMR}, {MR_OFF:#x}, v{vMR}")
        a(f"v_lshlrev_b32 v{vX}, 11, v14")
        a("v_bfe_u32 v15, v0, 4, 1"); a(f"v_lshl_add_u32 v{vX}, v15, 5, v{vX}")
        a("v_lshrrev_b32 v15, 5, v0"); a(f"v_lshl_add_u32 v{vX}, v15, 4, v{vX}")
        a(f"s_lshl_b32 s36, s32, 7\nv_add_u32 v{vX}, s36, v{vX}")
        a(f"s_lshl_b32 s36, s35, 11\ns_add_u32 s36, s36, {O_OFF:#x}\nv_lshl_add_u32 v{vO0}, v0, 4, s36\nv_add_u32 v{vO1}, 0x8000, v{vO0}")
        a("s_mov_b32 s37, 0x8000")
        if wait: self.spin(O_SEL, 8, 49, ("s_cmp_lg_u32", "0"), sleep=2)
        for t in range(2):
            so = "0" if t == 0 else "s37"
            a(f"buffer_load_dwordx2 {vr(MRR+2*t,2)}, v{vMR}, s[20:23], 0 offen offset:{128*t} sc1")
            for P in range(2):
                a(f"buffer_load_dwordx4 {vr(XR+(t*2+P)*4,4)}, v{vX}, s[8:11], {so} offen offset:{64*P}")

    def p2(self):
        a, L = self.a, self.L
        a.hist = []
        a(f"{L('p2')}:")
        self.p2decode()
        a("s_sub_u32 s3, s3, 4")
        self.woaddr()
        a(f"{L('p2c')}:")
        vm = LQ(a, "vmcnt", 63); lg = LQ(a, "lgkmcnt", 14)
        ACC, OB, WB, XR, MRR = 224, 96, 64, 200, 216
        vO0, vO1, vX, vMR, vF = 4, 5, 6, 7, 8
        vW, T1, T2, vB = 10, 14, 15, 60
        acc = lambda t, u: ACC + (t * 4 + u) * 4
        self.p2a(True)
        self.spin(O_XF + 4, vF, 49, ("s_cmp_lg_u32", "0"), sleep=1)
        self.spin(O_XF + 12, vF, 49, ("s_cmp_lg_u32", "0"), sleep=1)
        self.wopart(16, 2)
        a(f"s_waitcnt vmcnt(8)\ns_branch {L('p2e')}")
        a(f"{L('p2d')}:")
        if not self.wfirst: self.wopart(48, 3)
        a(f"s_waitcnt vmcnt({24 if self.wfirst > 1 else 16})\n{L('p2e')}:")
        a(f"ds_read_b128 v[24:27], v1 offset:{O_SEL}\nds_read_b128 v[28:31], v1 offset:{O_SEL+16}")
        vm.q = []
        def late(mode, lbl):
            a(f"s_cmp_lg_u32 s59, {mode}\ns_cbranch_scc1 {lbl}\ns_barrier")
            self.wopart(48, 3); self.wopart(96, 3)
            a(f"{lbl}:")
        if self.epiw: self.spin(O_EPI, vF, 49, ("s_cmp_ge_u32", "4"), sleep=2)
        self.stamp(3)
        for t in range(2):
            m = MRR + 2 * t
            a(f"v_mov_b32 v22, v{m+1}\nv_mov_b32 v23, v{m+1}\nv_mov_b32 v{m+1}, v{m}")
            for P in range(2):
                b = XR + (t * 2 + P) * 4
                a(f"v_permlane16_swap_b32 v{b}, v{b+2}\nv_permlane16_swap_b32 v{b+1}, v{b+3}")
            for u in range(4):
                b = XR + (t * 2 + (u >> 1)) * 4 + (u & 1) * 2
                d = acc(t, u)
                for j in range(2):
                    a(f"v_lshlrev_b32 v{d+2*j}, 16, v{b+j}\nv_and_b32 v{d+2*j+1}, s39, v{b+j}")
                a(f"v_pk_add_f32 v[16:17], {vr(d,2)}, {vr(m,2)} neg_lo:[0,1] neg_hi:[0,1]")
                a(f"v_pk_add_f32 v[18:19], {vr(d+2,2)}, {vr(m,2)} neg_lo:[0,1] neg_hi:[0,1]")
                if self.fai:
                    a(f"v_pk_fma_f32 {vr(d,2)}, v[16:17], v[22:23], {vr(d,2)}\nv_pk_fma_f32 {vr(d+2,2)}, v[18:19], v[22:23], {vr(d+2,2)}")
                    continue
                a("v_cvt_pk_bf16_f32 v20, v16, v17\nv_cvt_pk_bf16_f32 v21, v18, v19")
                a("v_lshlrev_b32 v16, 16, v20\nv_and_b32 v17, s39, v20\nv_lshlrev_b32 v18, 16, v21\nv_and_b32 v19, s39, v21")
                a(f"v_pk_mul_f32 v[16:17], v[16:17], v[22:23]")
                a(f"v_pk_mul_f32 v[18:19], v[18:19], v[22:23]")
                a("v_cvt_pk_bf16_f32 v20, v16, v17\nv_cvt_pk_bf16_f32 v21, v18, v19")
                a("v_lshlrev_b32 v16, 16, v20\nv_and_b32 v17, s39, v20\nv_lshlrev_b32 v18, 16, v21\nv_and_b32 v19, s39, v21")
                a(f"v_pk_add_f32 {vr(d,2)}, {vr(d,2)}, v[16:17]\nv_pk_add_f32 {vr(d+2,2)}, {vr(d+2,2)}, v[18:19]")
            if t == 0:
                a(f"s_cmp_lg_u32 s59, 1\ns_cbranch_scc1 {L('nl3')}\ns_waitcnt vmcnt({0 if self.wfirst else 12})\ns_barrier")
                self.wopart(96, 3)
                a(f"{L('nl3')}:")
            elif self.wfirst < 2:
                a(f"s_cmp_lg_u32 s59, 1\ns_cbranch_scc1 {L('nl4')}")
                self.wopart(16, 2)
                a(f"{L('nl4')}:")
        a("s_waitcnt lgkmcnt(0)")
        for k in range(8): a(f"v_readfirstlane_b32 s{40+k}, v{24+k}")
        for u in range(4):
            w_tr_laneaddr(a, vB + u, 0, T1, T2, u, 1024)
            a(f"v_add_u32 v{vB+u}, 0x4000, v{vB+u}")
        a(f"v_mov_b32 v22, {8*256}\nv_mov_b32 v23, {8*256}\ns_mov_b32 s48, 0")
        a("v_and_b32 v14, 15, v0\nv_add_u32 v14, s35, v14\nv_add_u32 v15, 16, v14")
        for t in range(8):
            a(f"s_and_b32 s49, s{40+t}, 0x7ff\ns_sub_u32 s49, 2047, s49")
            a(f"s_sub_u32 s50, s49, s35\ns_cmp_lt_u32 s50, 32\ns_cselect_b32 s48, 1, s48")
            a(f"v_mov_b32 v16, {t*256}")
            a("v_cmp_eq_u32 vcc, s49, v14\nv_cmp_eq_u32 s[52:53], s49, v15")
            a("v_cndmask_b32 v22, v22, v16, vcc\nv_cndmask_b32 v23, v23, v16, s[52:53]")
        if self.fl128:
            a(f"v_bfe_u32 v16, v0, 3, 1\nv_mul_u32_u24 v16, {16384-64}, v16\nv_sub_u32 v24, v{vX}, v16\nv_add_u32 v25, 0x4000, v24")
        a("v_lshrrev_b32 v16, 4, v0\nv_lshlrev_b32 v16, 4, v16")
        a(f"v_add_u32 v16, {L_UPD}, v16\nv_add_u32 v22, v22, v16\nv_add_u32 v23, v23, v16")
        def wread(n, u, i2):
            off = (n % 4) * 4096 + i2 * 2048
            r = WB + (n & 1) * 16 + u * 4 + i2 * 2
            a(f"ds_read_b64_tr_b16 {vr(r,2)}, v{vW+u} offset:{off}"); lg.add(("w", n, u))
        self.stamp(2)
        late(2, L("nl2"))
        if self.own:
            a("s_lshl_b32 s49, s30, 3\ns_mul_i32 s50, s49, 187\ns_lshr_b32 s50, s50, 11\ns_add_u32 s49, s49, 7\ns_mul_i32 s49, s49, 187\ns_lshr_b32 s49, s49, 11")
            a("v_mov_b32 v16, s50\nv_mov_b32 v17, s49\nv_cmp_gt_u32 vcc, 16, v0\nv_cndmask_b32 v16, v17, v16, vcc\nv_and_b32 v17, 15, v0\nv_lshlrev_b32 v17, 7, v17")
            a(f"v_lshl_add_u32 v27, v16, 11, v17\nv_add_u32 v27, {OFLAG_OFF:#x}, v27\nv_mov_b32 v26, 0")
            if self.own == 1: a(f"s_cmp_eq_u32 s59, 0\ns_cbranch_scc1 {L('nown')}")
            if self.own == 3: a("s_waitcnt vmcnt(4)")
            a(f"s_mov_b32 exec_hi, 0\nbuffer_load_dword v26, v27, s[20:23], 0 offen sc1\ns_mov_b32 exec_hi, -1\n{L('nown')}:")
        a(f"v_mov_b32 v16, 1\ns_mov_b64 exec, 1\ns_waitcnt vmcnt(0)\nds_add_u32 v1, v16 offset:{O_WO}\ns_mov_b64 exec, -1")
        self.stamp(4)
        if self.early:
            a(f"s_cmp_lg_u32 s3, 3\ns_cbranch_scc1 {L('p2w')}")
            self.opoll(False, L('p2w'))
            a(f"{L('p2w')}:\ns_mov_b64 exec, -1")
            self.spin(O_EPI, vF, 49, ("s_cmp_ge_u32", "4"))
        a("s_mov_b32 s54, 0\ns_mov_b32 s55, 0\ns_lshl_b32 s34, s34, 1\ns_mov_b32 s57, 0")
        if self.fine:
            a("s_lshl_b32 s49, s30, 3\ns_mul_i32 s50, s49, 187\ns_lshr_b32 s50, s50, 11\ns_lshr_b32 s51, s35, 4\ns_mul_i32 s52, s51, 187\ns_lshr_b32 s52, s52, 11")
            a("s_cmp_eq_u32 s50, s52\ns_cselect_b32 s57, 0, 0xffff")
            a("s_add_u32 s49, s49, 7\ns_mul_i32 s50, s49, 187\ns_lshr_b32 s50, s50, 11\ns_add_u32 s51, s51, 1\ns_mul_i32 s52, s51, 187\ns_lshr_b32 s52, s52, 11")
            a("s_cmp_eq_u32 s50, s52\ns_cselect_b32 s50, 0, s39\ns_or_b32 s57, s57, s50")
        if self.own: a("v_cmp_ne_u32 vcc, 0, v26\ns_or_b32 s57, s57, vcc_lo")
        def sel_ld(i, guard=False, noload=False):
            A, B, C = a.newlabel("F_sa"), a.newlabel("F_sb"), a.newlabel("F_sc")
            if guard and i < 3: a(f"s_mov_b32 s38, 0\ns_cmp_eq_u32 s55, 0x5555\ns_cselect_b32 s22, 0, s22\ns_cbranch_scc1 {C}")
            a(f"{A}:\ns_andn2_b32 s49, s54, s55\ns_cbranch_scc1 {B}")
            a(f"ds_read_b32 v{vF}, v1 offset:{O_GO}\ns_waitcnt lgkmcnt(0)\nv_readfirstlane_b32 s54, v{vF}\ns_or_b32 s54, s54, s57\ns_lshr_b32 s50, s54, 16\ns_and_b32 s54, s54, s50\ns_lshr_b32 s50, s54, 1\ns_and_b32 s54, s54, s50\ns_and_b32 s54, s54, 0x5555\ns_branch {A}")
            a(f"{B}:\ns_lshl_b32 s50, s49, 16\ns_or_b32 s49, s49, s50\ns_lshr_b32 s49, s49, s34\ns_ff1_i32_b32 s49, s49\ns_add_u32 s49, s49, s34\ns_and_b32 s49, s49, 15")
            a(f"s_bitset1_b32 s55, s49\ns_lshl_b32 s38, s49, 11\ns_add_u32 s49, s49, {4 if self.wsh else 6}\ns_and_b32 s49, s49, 15\ns_lshl_b32 s{64+i}, s49, 13\n{C}:")
            if not noload:
                for st in range(4): ld(i, st)
        def ld(i, st):
            for t in range(2):
                r = OB + (i % 4) * 32 + (st * 2 + t) * 4
                a(f"buffer_load_dwordx4 {vr(r,4)}, v{vO0+t}, s[20:23], s38 offen offset:{1024*st} sc1"); vm.add(("o", i, st))
        def waddr(i):
            for u in range(4): a(f"v_add_u32 v{vW+u}, s{64+i}, v{vB+u}")
        sel_ld(0)
        self.stamp(5)
        sel_ld(1)
        waddr(0)
        self.spin(O_WO, vF, 49, ("s_cmp_ge_u32", "4"))
        if self.p2v == 2:
            W3 = [40, 64, 80]
            def wr3(n, u, i2):
                a(f"ds_read_b64_tr_b16 {vr(W3[n%3]+u*4+i2*2,2)}, v{vW+u} offset:{(n%4)*4096+i2*2048}"); lg.add(("w", n))
            for n in range(2):
                for u in range(4):
                    for i2 in range(2): wr3(n, u, i2)
                if n == 0: a("s_waitcnt lgkmcnt(4)")
            LA = self.la
            a("v_mov_b32 v9, 1")
            for i in range(2, LA): sel_ld(i)
            if self.p2p: a(f"s_setprio {self.p2p}")
            slowp = []
            def sel_parts(i):
                A, S = a.newlabel("F_sa"), a.newlabel("F_ss")
                slowp.append(f"{S}:\nds_read_b32 v{vF}, v1 offset:{O_GO}\ns_waitcnt lgkmcnt(0)\nv_readfirstlane_b32 s54, v{vF}\ns_or_b32 s54, s54, s57\ns_lshr_b32 s50, s54, 16\ns_and_b32 s54, s54, s50\ns_lshr_b32 s50, s54, 1\ns_and_b32 s54, s54, s50\ns_and_b32 s54, s54, 0x5555\ns_branch {A}")
                return [f"{A}:\ns_andn2_b32 s49, s54, s55\ns_cbranch_scc0 {S}", "s_lshl_b32 s50, s49, 16\ns_or_b32 s49, s49, s50", "s_lshr_b32 s49, s49, s34\ns_ff1_i32_b32 s49, s49",
                        "s_add_u32 s49, s49, s34\ns_and_b32 s49, s49, 15", f"s_bitset1_b32 s55, s49\ns_lshl_b32 s{36 + 2 * (i & 1)}, s49, 11", f"s_add_u32 s49, s49, 4\ns_and_b32 s49, s49, 15\ns_lshl_b32 s{64+i}, s49, 13"]
            def ld1(i, st, t):
                r = OB + (i % 4) * 32 + (st * 2 + t) * 4
                a(f"buffer_load_dwordx4 {vr(r,4)}, v{vO0+t}, s[20:23], s{36 + 2 * (i & 1)} offen offset:{1024*st} sc1"); vm.add(("o", i, st))
            if self.p2i:
                for p in sel_parts(LA): a(p)
            for n in range(32 if self.p2i else 0):
                gi, st = n // 4, n % 4
                fill = {}
                if gi + LA < 8: fill[self.p2i - 1] = [lambda: ld1(gi + LA, st, 0)]; fill[self.p2i + 3] = [lambda: ld1(gi + LA, st, 1)]
                free = [k for k in range(8) if k not in fill]
                if st == 3 and gi + 1 + LA < 8:
                    for k, p in zip(free, sel_parts(gi + 1 + LA)): fill[k] = [p]
                if st == 1 and gi < 7:
                    for u in range(4): fill.setdefault(2 * u + 1, []).append(f"v_add_u32 v{vW+u}, s{64+gi+1}, v{vB+u}")
                if self.upf and n == self.upf:
                    def f1(): a(f"ds_read_b32 v{vF}, v1 offset:{O_HELP}"); lg.add("hp")
                    fill[0] = [f1]
                if self.upf and n == self.upf + 1:
                    def f2(): lg.wait("hp"); a(f"v_readfirstlane_b32 s49, v{vF}")
                    def f3():
                        a(f"s_cbranch_scc0 {L('upn')}")
                        for t in range(2):
                            for u in range(4): a(f"ds_read_b128 {vr(OB+(t*4+u)*4,4)}, v{22+t} offset:{64*u}")
                        a(f"s_lshl_b32 s48, s48, 1\n{L('upn')}:")
                    fill[1] = [f2]; fill[3] = ["s_mul_i32 s49, s49, s48\ns_cmp_ge_u32 s49, 3"]; fill[4] = [f3]
                vm.wait(("o", gi, st))
                if n == 0: self.stamp(6); lg.q = [] if self.stamps else lg.q
                lg.wait(("w", n))
                for u in range(4):
                    for t in range(2):
                        ob = OB + (gi % 4) * 32 + (st * 2 + t) * 4
                        a(f"v_mfma_f32_16x16x32_bf16 {vr(acc(t,u),4)}, {vr(W3[n%3]+u*4,4)}, {vr(ob,4)}, {vr(acc(t,u),4)}")
                        if n + 2 < 32: wr3(n + 2, u, t)
                        for f in fill.get(2 * u + t, []): f() if callable(f) else a(f)
                        if 2 * u + t == 2 and (n == 4 * self.ldg - 2 or n == 4 * self.ldp - 2):
                            a(f"s_mov_b64 exec, 1\nds_add_u32 v1, v9 offset:{O_FULL}\ns_mov_b64 exec, -1"); lg.add("c")
            self.slowp = slowp
            for n in range(0 if self.p2i else 32):
                gi, st = n // 4, n % 4
                if st == 0 and gi + LA < 8: sel_ld(gi + LA, noload=True)
                vm.wait(("o", gi, st))
                if n == 0: self.stamp(6); lg.q = [] if self.stamps else lg.q
                if st == 2 and gi < 7: waddr(gi + 1)
                lg.wait(("w", n))
                for u in range(4):
                    for t in range(2):
                        ob = OB + (gi % 4) * 32 + (st * 2 + t) * 4
                        a(f"v_mfma_f32_16x16x32_bf16 {vr(acc(t,u),4)}, {vr(W3[n%3]+u*4,4)}, {vr(ob,4)}, {vr(acc(t,u),4)}")
                        if n + 2 < 32: wr3(n + 2, u, t)
                if gi + LA < 8: ld(gi + LA, st)
                if self.ldg is not None and (n == 4 * self.ldg - 1 or (self.agg and n == 4 * self.ldp - 1)):
                    a(f"s_mov_b64 exec, 1\nds_add_u32 v1, v9 offset:{O_FULL}\ns_mov_b64 exec, -1"); lg.add("c")
        else:
            for u in range(4):
                for i2 in range(2): wread(0, u, i2)
            for i in range(2, 4): sel_ld(i)
        if self.p2v == 2: pass
        elif self.p2loop:
            if self.stamps:
                a("s_waitcnt vmcnt(30)"); self.stamp(6)
            lg.waitall()
            def body():
                for n in range(16):
                    gi, st = n // 4, n % 4
                    vm.wait(("o", gi, st))
                    if st == 3 and gi < 3: waddr(gi + 1)
                    if st == 3 and gi == 3: waddr(0)
                    for u in range(4):
                        lg.wait(("w", n, u))
                        for t in range(2):
                            ob = OB + gi * 32 + (st * 2 + t) * 4
                            wb = WB + (n & 1) * 16 + u * 4
                            a(f"v_mfma_f32_16x16x32_bf16 {vr(acc(t,u),4)}, {vr(wb,4)}, {vr(ob,4)}, {vr(acc(t,u),4)}")
                            wread((n + 1) % 16, u, t)
                    if st == 3:
                        if gi == 3: a(f"s_cmp_eq_u32 s55, 0x5555\ns_cbranch_scc1 {L('p2x')}")
                        sel_ld(gi, True)
            q0 = list(vm.q)
            save = (list(a.lines), list(a.hist), a.nlabel)
            body(); ql = list(lg.q)
            assert vm.q == q0, (vm.q, q0)
            a.lines, a.hist, a.nlabel = save
            lg.q = ql
            a(f"{L('p2l')}:")
            body()
            assert lg.q == ql
            a(f"s_branch {L('p2l')}\n{L('p2x')}:\ns_waitcnt vmcnt(0) lgkmcnt(0)")
        else:
            for n in range(32):
                gi, st = n // 4, n % 4
                vm.wait(("o", gi, st))
                if n == 0: self.stamp(6); lg.q = [] if self.stamps else lg.q
                if st == 3 and gi < 7: waddr(gi + 1)
                for u in range(4):
                    lg.wait(("w", n, u))
                    for t in range(2):
                        ob = OB + (gi % 4) * 32 + (st * 2 + t) * 4
                        wb = WB + (n & 1) * 16 + u * 4
                        a(f"v_mfma_f32_16x16x32_bf16 {vr(acc(t,u),4)}, {vr(wb,4)}, {vr(ob,4)}, {vr(acc(t,u),4)}")
                        if n + 1 < 32: wread(n + 1, u, t)
                if st == 3 and gi + 4 < 8: sel_ld(gi + 4)
        self.stamp(7)
        NOUPD = L("noupd")
        a(f"s_cmp_eq_u32 s48, 0\ns_cbranch_scc1 {NOUPD}")
        if self.upf: a(f"s_cmp_eq_u32 s48, 2\ns_cbranch_scc1 {L('upr')}")
        self.spin(O_HELP, vF, 49, ("s_cmp_ge_u32", "3"))
        for t in range(2):
            for u in range(4): a(f"ds_read_b128 {vr(OB+(t*4+u)*4,4)}, v{22+t} offset:{64*u}")
        if self.upf:
            a(f"{L('upr')}:"); a.flush(8)
        a("s_waitcnt lgkmcnt(0)")
        for t in range(2):
            for u in range(4):
                d, o = acc(t, u), OB + (t * 4 + u) * 4
                a(f"v_pk_add_f32 {vr(d,2)}, {vr(d,2)}, {vr(o,2)}\nv_pk_add_f32 {vr(d+2,2)}, {vr(d+2,2)}, {vr(o+2,2)}")
        a(f"{NOUPD}:")
        a.flush(8)
        for t in range(2):
            for P in range(2):
                b = XR + (t * 2 + P) * 4
                for e in range(2):
                    d = acc(t, 2 * P + e)
                    a(f"v_cvt_pk_bf16_f32 v{b+2*e}, v{d}, v{d+1}\nv_cvt_pk_bf16_f32 v{b+2*e+1}, v{d+2}, v{d+3}")
        if self.fl128:
            for t in range(2):
                for P in range(2):
                    b = XR + (t * 2 + P) * 4
                    a(f"v_permlane16_swap_b32 v{b}, v{b+2}\nv_permlane16_swap_b32 v{b+1}, v{b+3}")
            for t in range(2):
                so = "0" if t == 0 else "s37"
                A, B = XR + t * 8, XR + t * 8 + 4
                for r in range(4): a(f"v_mov_b32 v{16+r}, v{A+r}")
                for r in range(4): a(f"v_mov_b32_dpp v{A+r}, v{B+r} row_ror:8 row_mask:0xf bank_mask:0xc")
                a(f"buffer_store_dwordx4 {vr(A,4)}, v24, s[16:19], {so} offen {self.ofl}")
                for r in range(4): a(f"v_mov_b32_dpp v{B+r}, v{16+r} row_ror:8 row_mask:0xf bank_mask:0x3")
                a(f"buffer_store_dwordx4 {vr(B,4)}, v25, s[16:19], {so} offen {self.ofl}")
        else:
            for t in range(2):
                so = "0" if t == 0 else "s37"
                for P in range(2):
                    b = XR + (t * 2 + P) * 4
                    a(f"v_permlane16_swap_b32 v{b}, v{b+2}\nv_permlane16_swap_b32 v{b+1}, v{b+3}")
                    a(f"buffer_store_dwordx4 {vr(b,4)}, v{vX}, s[16:19], {so} offen offset:{64*P} {self.ofl}")
        self.finish()
        for p in self.slowp: a(p)
        a.hist = []

    def help2(self):
        a, L = self.a, self.L
        a(f"{L('help2')}:")
        self.p2decode()
        srd(a, 20, 74, WS_SIZE)
        if self.hg2: a(f"s_cmp_lt_u32 s29, 24\ns_cbranch_scc1 {L('nhg')}")
        if self.hgate: self.spin(O_WO, 16, 49, ("s_cmp_ge_u32", str(self.hgate)), sleep=1)
        if self.hg2: a(f"{L('nhg')}:")
        a(f"s_cmp_lg_u32 s3, 0\ns_cbranch_scc1 {L('h2t')}\n{L('h2p')}:")
        self.opoll(True, L('h2e'))
        a(f"{L('h2t')}:")
        a("s_lshl_b32 s35, s30, 7\ns_lshl_b32 s36, s3, 2\nv_add_u32 v2, s36, v1")
        a(f"ds_read_b32 v10, v2 offset:{O_SEL+20}\nds_read2_b32 v[2:3], v2 offset0:{O_SEL//4-1} offset1:{O_SEL//4+2}")
        a("v_lshrrev_b32 v4, 4, v0\nv_lshlrev_b32 v4, 15, v4\nv_and_b32 v5, 15, v0\nv_lshl_add_u32 v4, v5, 4, v4")
        a(f"s_lshl_b32 s36, s32, 8\ns_add_u32 s36, s36, {PART_OFF:#x}\nv_add_u32 v4, s36, v4")
        a(f"v_lshlrev_b32 v5, 4, v5\nv_add_u32 v5, {L_UPD}, v5")
        a(f"v_min_u32 v7, 55, v0\nv_lshlrev_b32 v7, 7, v7\nv_add_u32 v7, {PFLAG_OFF:#x}, v7")
        a("s_waitcnt lgkmcnt(0)\nv_readfirstlane_b32 s60, v2\nv_readfirstlane_b32 s61, v3\nv_readfirstlane_b32 s62, v10\ns_sub_u32 s36, s3, 1")
        LOOP, NEXT = L("hl"), L("hn")
        a(f"{LOOP}:")
        a("s_and_b32 s49, s60, 0x7ff\ns_sub_u32 s49, 2047, s49\ns_sub_u32 s49, s49, s35")
        a(f"s_cmp_lt_u32 s49, 128\ns_cbranch_scc0 {NEXT}")
        if self.agg:
            srd(a, 24, 72, 0x100)
            self.spin(O_FULL, 8, 49, ("s_cmp_ge_u32", "4"), sleep=2)
            a("v_mov_b32 v7, 64")
            self.gpoll(self.pl(8, 7, "s[24:27]"), 8, "v_cmp_ne_u32 vcc, 0, v8", 49, 12)
            self.spin(O_FULL, 8, 49, ("s_cmp_ge_u32", "8"), sleep=2)
        else:
            if self.pmask:
                a(f"s_mov_b32 s49, 0\n{L('pp')}:\n{self.pl(8, 7, 's[20:23]')}\ns_waitcnt vmcnt(0)\nv_cmp_eq_u32 vcc, 0, v8\ns_add_u32 s49, s49, 1\ns_cmp_eq_u64 vcc, 0\ns_cbranch_scc1 {L('pq')}")
                a(f"s_cmp_lt_u32 s49, {POLL_MAX:#x}\ns_cbranch_scc0 {L('pq')}\ns_mov_b64 exec, vcc\ns_sleep {self.psl}\ns_branch {L('pp')}\n{L('pq')}:\ns_mov_b64 exec, -1")
            else:
                self.gpoll(self.pl(8, 7, "s[20:23]"), 8, "v_cmp_ne_u32 vcc, 0, v8", 49, self.psl)
            if self.ldg is not None: self.spin(O_FULL, 8, 49, ("s_cmp_ge_u32", "4"), sleep=2)
        a("s_lshl_b32 s37, s36, 12")
        for i in range(14):
            a(f"buffer_load_dwordx4 {vr(16+4*i,4)}, v4, s[20:23], s37 offen sc1")
            if i < 13: a("s_add_u32 s37, s37, 0x20000")
        a("s_lshr_b32 s50, s60, 16\ns_xor_b32 s51, s50, 0x8000\ns_xor_b32 s52, s50, 0xffff\ns_bitcmp1_b32 s50, 15\ns_cselect_b32 s50, s51, s52\ns_lshl_b32 s50, s50, 16")
        a("v_mov_b32 v8, s50\nv_mul_f32 v8, 0xbfb8aa3b, v8\nv_exp_f32 v8, v8\nv_add_f32 v8, 1.0, v8\nv_rcp_f32 v8, v8")
        a("v_cvt_pk_bf16_f32 v8, v8, v8\nv_and_b32 v8, s39, v8")
        for i in range(1, 14):
            a(f"s_waitcnt vmcnt({13-i})")
            a(f"v_pk_add_f32 v[16:17], v[16:17], {vr(16+4*i,2)}\nv_pk_add_f32 v[18:19], v[18:19], {vr(18+4*i,2)}")
        for sw in ("v_permlane32_swap_b32", "v_permlane16_swap_b32"):
            for i in range(4): a(f"v_mov_b32 v{20+i}, v{16+i}")
            for i in range(4): a(f"{sw} v{16+i}, v{20+i}")
            a("v_pk_add_f32 v[16:17], v[16:17], v[20:21]\nv_pk_add_f32 v[18:19], v[18:19], v[22:23]")
        a("v_cvt_pk_bf16_f32 v20, v16, v17\nv_cvt_pk_bf16_f32 v21, v18, v19")
        a("v_lshlrev_b32 v16, 16, v20\nv_and_b32 v17, s39, v20\nv_lshlrev_b32 v18, 16, v21\nv_and_b32 v19, s39, v21")
        for i in range(4): a(f"v_mul_f32 v{16+i}, v{16+i}, v8")
        a("v_cvt_pk_bf16_f32 v20, v16, v17\nv_cvt_pk_bf16_f32 v21, v18, v19")
        a("v_lshlrev_b32 v16, 16, v20\nv_and_b32 v17, s39, v20\nv_lshlrev_b32 v18, 16, v21\nv_and_b32 v19, s39, v21")
        a("s_lshl_b32 s37, s36, 8\nv_add_u32 v6, s37, v5")
        a("ds_write_b128 v6, v[16:19]")
        a(f"{NEXT}:")
        a(f"s_mov_b32 s60, s61\ns_mov_b32 s61, s62\ns_add_u32 s36, s36, 3\ns_cmp_lt_u32 s36, 8\ns_cbranch_scc1 {LOOP}")
        a(f"v_mov_b32 v9, 1\ns_mov_b64 exec, 1\ns_waitcnt lgkmcnt(0)\nds_add_u32 v1, v9 offset:{O_HELP}")
        if self.npoll > 1: a(f"s_mov_b64 exec, -1\ns_cmp_lt_u32 s3, {self.npoll}\ns_cbranch_scc1 {L('h2p')}")
        a(f"{L('h2e')}:")
        self.finish()

    def cons(self):
        a, L = self.a, self.L
        a(f"{L('cons')}:")
        ACC = 112
        acc = lambda t, c: ACC + (t * 6 + c) * 4
        XF, WF = 40, 64
        vXa, vXh, vWa, vMk, vFR, vCnt, vFA, vF = 2, 4, 6, 8, 9, 10, 11, 12
        cCSW, cCVW, cXFW, cONE, cMM, cM4, cXCH, cSEL, cNEG, cOST, cRK0, cRK1 = 13, 14, 15, 16, 17, 18, 19, 20, 24, 25, 26, 27
        cCSR, cCVR, cRSQ, cXFR, cXCW = 28, 29, 30, 31, 32
        CSV = 34
        MM, RK = 64, 76
        RSQ = 2
        M4 = 88
        KP, VPV = 56, 60
        csq = lambda c: XF + 4 * c
        mm = lambda t: MM + 2 * t
        rk = lambda t: RK + 2 * t
        if self.ch:
            csq = lambda c: {2: 48, 3: 52, 0: 76, 1: 80}[c]
            mm = lambda t: (72, 68, 64)[t >> 1] + 2 * (t & 1)
            rk = lambda t: 40 + 2 * t if t < 4 else 2 * t
        T = 38
        if self.cop:
            x0, xn, wn = self.cop
            a(f"s_and_b32 s36, s31, 3\ns_mul_i32 s36, s36, 48\ns_add_u32 s36, s36, s33\nv_add_u32 v5, s36, v0\nv_max_i32 v5, 0, v5\nv_lshlrev_b32 v5, 11, v5\ns_add_u32 s36, s3, {x0}\ns_lshl_b32 s36, s36, 7")
            a(f"s_cmp_ge_u32 s30, 6\ns_cselect_b32 s37, 6, 0\ns_sub_u32 s37, s30, s37\ns_lshl_b32 s37, s37, 16\ns_mul_i32 s38, s3, 393216\ns_add_u32 s37, s37, s38\ns_lshl_b32 s38, s31, 7\ns_add_u32 s37, s37, s38\nv_lshlrev_b32 v6, 11, v0")
            a(f"s_cmp_lt_u32 s3, {xn}\ns_cselect_b32 s10, 0x400000, 0\ns_cmp_lt_u32 s3, {wn}\ns_cselect_b32 s14, 0x600000, 0\ns_mov_b32 s11, 0x20000\ns_mov_b32 s15, 0x20000\ns_waitcnt lgkmcnt(0)")
            a("s_mov_b32 s8, s4\ns_mov_b32 s9, s5\ns_mov_b32 s12, s6\ns_mov_b32 s13, s7\ns_mov_b32 exec_hi, 0xffff\nbuffer_load_dword v11, v5, s[8:11], s36 offen\ns_mov_b32 exec_hi, 0")
            if wn: a("buffer_load_dword v11, v6, s[12:15], s37 offen")
            a("s_mov_b32 exec_hi, -1")
        a(f"v_lshl_add_u32 v2, v0, 2, v1\nv_mov_b32 v3, 0x3f803f80\nv_cmp_gt_u32 vcc, 16, v0\nv_mov_b32 v4, 0\nv_cndmask_b32 v3, v3, 0, vcc")
        a(f"ds_write_b32 v2, v3\nds_write_b32 v2, v4 offset:{O_SEL}\nds_write_b32 v2, v4 offset:{L_UPD+2048-MISC}\ns_and_b32 s40, s3, 1\ns_lshr_b32 s41, s3, 1")
        if self.codepf:
            a(f"s_cmp_lg_u32 s29, 0\ns_cbranch_scc1 {L('ncp')}\ns_getpc_b64 s[8:9]\n{L('pc')}:")
            a(f"s_sub_u32 s8, s8, {L('pc')}-{KNAME}\ns_subb_u32 s9, s9, 0\ns_mov_b32 s10, {L('end')}-{KNAME}\ns_lshl_b32 s36, s3, 13")
            a(f"v_lshl_add_u32 v5, v0, 7, s36\nv_min_u32 v5, s10, v5\nv_mov_b32 v7, s9\nv_add_co_u32 v6, vcc, s8, v5\nv_addc_co_u32 v7, vcc, 0, v7, vcc\nglobal_load_dword v9, v[6:7], off\n{L('ncp')}:")
        a("s_waitcnt lgkmcnt(0)\ns_mov_b32 s64, 0")
        srd(a, 20, 74, WS_SIZE)
        if self.zg:
            a(f"s_lshl_b32 s65, s2, 2\ns_add_u32 s65, s65, s3\ns_cmp_lg_u32 s65, 32\ns_cbranch_scc1 {L('nzg')}\nv_lshlrev_b32 v5, 7, v0\ns_mov_b32 s36, {OFLAG_OFF:#x}")
            for k in range(5): a("buffer_store_dword v4, v5, s[20:23], s36 offen sc1\ns_add_u32 s36, s36, 0x2000")
            a(f"{L('nzg')}:")
        I, Gp = 38, 39
        a(f"v_and_b32 v{I}, 15, v0\nv_lshrrev_b32 v{Gp}, 4, v0\nv_lshrrev_b32 v34, 1, v{I}\nv_xor_b32 v34, v{Gp}, v34")
        a(f"v_lshlrev_b32 v34, 4, v34\nv_lshl_add_u32 v{vXa}, v{I}, 7, v34\ns_mul_i32 s42, s41, 12288\nv_add_u32 v{vXa}, s42, v{vXa}")
        a(f"v_xor_b32 v{vXa+1}, 64, v{vXa}")
        a(f"v_or_b32 v34, s41, v{I}\nv_cmp_eq_u32 vcc, 0, v34\nv_mov_b32 v35, {L_ONES}")
        a(f"v_cndmask_b32 v{vXh}, v{vXa}, v35, vcc\nv_cndmask_b32 v{vXh+1}, v{vXa+1}, v35, vcc\nv_cndmask_b32 v{vMk}, 1, 0, vcc")
        a(f"s_lshl_b32 s42, s40, 9\ns_add_u32 s42, s42, {L_CS}\nv_lshl_add_u32 v{cCSR}, v{Gp}, 4, s42\nv_lshl_add_u32 v{cCVR}, v{I}, 2, s42")
        a(f"v_lshlrev_b32 v36, 4, v0\nv_add_u32 v36, {L_DUMMY}, v36\nv_cndmask_b32 v{cCSW}, v36, v{cCSR}, vcc")
        a(f"v_or_b32 v34, s41, v{Gp}\nv_cmp_eq_u32 vcc, 0, v34\ns_lshl_b32 s43, s40, 3\nv_add_u32 v{cXFR}, s43, v1\nv_cndmask_b32 v{cCVW}, v36, v{cCVR}, vcc")
        a(f"v_or_b32 v34, s41, v0\nv_cmp_eq_u32 vcc, 0, v34\nv_mov_b32 v{cONE}, 1\nv_cndmask_b32 v{cXFW}, v36, v{cXFR}, vcc")
        a(f"s_lshl_b32 s42, s40, 11\ns_add_u32 s42, s42, {L_XCH}\nv_lshl_add_u32 v{cXCH}, v0, 4, s42\ns_cmp_eq_u32 s41, 0\ns_cselect_b64 vcc, -1, 0\nv_cndmask_b32 v{cXCW}, v36, v{cXCH}, vcc")
        a("s_mul_i32 s42, s41, 96")
        a(f"v_add_u32 v34, s42, v{I}\nv_lshlrev_b32 v{cMM}, 3, v34\nv_add_u32 v{cMM}, {L_MRI}, v{cMM}\nv_lshlrev_b32 v{cRSQ}, 2, v34\nv_add_u32 v{cRSQ}, {L_M+768}, v{cRSQ}")
        a(f"v_lshlrev_b32 v{cM4}, 2, v{Gp}\nv_add_u32 v{cM4}, s42, v{cM4}\nv_lshlrev_b32 v{cM4}, 2, v{cM4}\nv_add_u32 v{cM4}, {L_M}, v{cM4}")
        a(f"v_and_b32 v34, 1, v{I}\nv_lshl_add_u32 v35, v{Gp}, 2, v34\nv_add_u32 v36, 2, v35")
        a(f"v_cmp_eq_u32 s[50:51], 1, v34\nv_cmp_le_u32 s[52:53], v35, v{I}\nv_cmp_le_u32 s[54:55], v36, v{I}")
        a(f"s_lshl_b32 s42, s42, 2\ns_add_u32 s42, s42, {L_M+768}")
        a(f"v_lshl_add_u32 v35, v35, 2, s42\nv_lshl_add_u32 v36, v36, 2, s42\nv_subrev_u32 v34, 64, v35\nv_subrev_u32 v37, 64, v36")
        a(f"v_cndmask_b32 v{cRK0}, v34, v35, s[52:53]\nv_cndmask_b32 v{cRK1}, v37, v36, s[54:55]")
        a("v_mov_b32 v34, 0x0c0c0504\nv_mov_b32 v35, 0x05040c0c\nv_cndmask_b32 v34, v34, v35, s[50:51]")
        a("v_mov_b32 v35, 0x0c0c0706\nv_mov_b32 v36, 0x07060c0c\nv_cndmask_b32 v35, v35, v36, s[50:51]\nv_mov_b32 v36, 0x0c0c0c0c")
        a(f"v_cndmask_b32 v{cSEL}, v34, v36, s[52:53]\nv_cndmask_b32 v{cSEL+1}, v35, v36, s[54:55]")
        a(f"v_cndmask_b32 v{cSEL+2}, v36, v34, s[52:53]\nv_cndmask_b32 v{cSEL+3}, v36, v35, s[54:55]")
        a("s_or_b32 s42, s30, s41\ns_cmp_eq_u32 s42, 0\ns_cselect_b64 s[56:57], -1, 0")
        a("s_andn2_b64 s[58:59], s[56:57], s[54:55]\ns_andn2_b64 s[56:57], s[56:57], s[52:53]")
        a(f"v_mov_b32 v{cNEG}, {NEG_BIG:#x}\ns_mov_b32 s61, {SM_C:#x}")
        a("s_mul_i32 s42, s30, 11\ns_mul_i32 s43, s41, 6\ns_add_u32 s42, s42, s43\ns_lshl_b32 s42, s42, 15")
        a(f"s_lshl_b32 s43, s31, 1\ns_add_u32 s43, s43, s40\ns_lshl_b32 s43, s43, 10\ns_add_u32 s42, s42, s43\ns_add_u32 s42, s42, {O_OFF-32768:#x}")
        a(f"v_lshl_add_u32 v{cOST}, v0, 4, s42")
        a(f"s_lshl_b32 s42, s30, 11\ns_lshl_b32 s43, s31, 7\ns_add_u32 s42, s42, s43\ns_add_u32 s42, s42, {OFLAG_OFF:#x}\nv_mov_b32 v33, s42")
        for t in range(1, 6): a(f"s_mov_b32 s{65+t}, {t*32768}")
        a("s_lshl_b32 s42, s40, 1\ns_add_u32 s43, s42, 1")
        w_tr_laneaddr(a, vWa, 0, 34, 35, 0, 2048, u_sreg=42)
        w_tr_laneaddr(a, vWa + 1, 0, 34, 35, 0, 2048, u_sreg=43)
        a(f"s_mov_b32 s44, 0\ns_mov_b32 s45, 0\ns_mov_b32 s62, {SLOT}\ns_mov_b32 s63, {-2*SLOT}\ns_setprio 2")
        for r in range(ACC, 256, 2): a(f"v_pk_mul_f32 {vr(r,2)}, v[10:11], 0" if False else f"v_mov_b64 {vr(r,2)}, 0")
        lg = LQ(a, "lgkmcnt", 14)
        def xread(t, h):
            va = (vXh if t == 0 else vXa) + h
            a(f"ds_read_b128 {vr(XF+4*t,4)}, v{va} offset:{2048*t}"); lg.add(("x", t))
        def wread(c, i2, h):
            seg, e = c >> 1, c & 1
            a(f"ds_read_b64_tr_b16 {vr(WF+h*24+c*4+i2*2,2)}, v{vWa+e} offset:{24576+seg*8192+h*4096+i2*1024}"); lg.add(("w", h, c))
        F0 = L("f0")
        if self.zg:
            srd(a, 24, 72, 0x100)
            a(f"s_cmp_lg_u32 s65, 32\ns_cbranch_scc1 {L('nzh')}\nv_mov_b32 v34, 0\ns_mov_b64 exec, 1\ns_waitcnt vmcnt(0)\nbuffer_store_dword v{cONE}, v34, s[24:27], 0 offen sc1\ns_mov_b64 exec, -1\n{L('nzh')}:")
        a("s_barrier")
        self.stamp(2)
        if self.stamps: a("s_memtime s[98:99]\ns_waitcnt lgkmcnt(0)\ns_mov_b32 s94, s98")
        def sec(k, first=False): pass
        if self.ch:
            X2 = lambda t, h: 64 + 8 * t + 4 * h
            W2 = lambda c, h: 40 + 8 * (c % 3) + 4 * h
            def xr(t, h):
                a(f"ds_read_b128 {vr(X2(t,h),4)}, v{(vXh if t == 0 else vXa)+h} offset:{2048*t}"); lg.add(("x", t))
            def wr(c, h, i2):
                a(f"ds_read_b64_tr_b16 {vr(W2(c,h)+2*i2,2)}, v{vWa+(c&1)} offset:{24576+(c>>1)*8192+h*4096+i2*1024}"); lg.add(("w", c))
            def ds(txt, tag):
                def f():
                    a(txt); lg.add(tag)
                return f
            def after(tag, txt):
                def f():
                    lg.wait(tag); a(txt)
                return f
            def mf(c, t, h):
                w, x = vr(W2(c, h), 4), vr(X2(t, h), 4)
                A, B = (w, x) if c < 4 else (x, w)
                a(f"v_mfma_f32_16x16x32_bf16 {vr(acc(t,c),4)}, {A}, {B}, {vr(acc(t,c),4)}")
            HI = [(h, i2) for h in range(2) for i2 in range(2)]
            for h, i2 in HI: wr(0, h, i2)
            for t in range(6):
                for h in range(2): xr(t, h)
                if t < 4: wr(1, *HI[t])
                if t == 2: a("s_waitcnt lgkmcnt(6)")
            LOOP, LAST = L("loop"), L("last")
            fb = {(0, 0): "s_cmp_eq_u32 s45, 2\ns_cselect_b32 s47, s63, s62", (0, 1): "s_cselect_b32 s45, -1, s45\ns_add_u32 s45, s45, 1",
                  (1, 0): f"s_add_u32 s44, s44, 1\nv_add_u32 v{vXa}, s47, v{vXa}", (1, 1): f"v_mad_i32_i24 v{vXh}, v{vMk}, s47, v{vXh}",
                  (1, 2): f"v_add_u32 v{vXa+1}, s47, v{vXa+1}", (1, 3): f"v_mad_i32_i24 v{vXh+1}, v{vMk}, s47, v{vXh+1}",
                  (2, 5): ds(f"ds_read_b32 v{vF}, v1 offset:{O_SEL}", "flag"),
                  (3, 4): f"v_add_u32 v{vWa}, s47, v{vWa}\nv_add_u32 v{vWa+1}, s47, v{vWa+1}", (3, 5): "s_cmp_eq_u32 s44, 16"}
            qmid = []
            def body():
                for c in range(6):
                    if c == 4:
                        a(f"s_cbranch_scc1 {LAST}"); qmid[:] = list(lg.q)
                    wl = list(HI)
                    lg.wait(("w", c))
                    for t in range(6):
                        if c == 0: lg.wait(("x", t))
                        for h in range(2):
                            mf(c, t, h)
                            if c == 5: xr(t, h)
                            if h == 1 and wl and not (c == 4 and t < self.chb): wr((c + 2) % 6, *wl.pop(0))
                            if (c, t, h) == (4, self.chb, 0):
                                lg.wait(("w", 5)); a("s_barrier")
                            if h == 0 and (c, t) in fb:
                                f = fb[(c, t)]
                                f() if callable(f) else a(f)
                    assert not wl
            q0 = list(lg.q)
            save = (list(a.lines), list(a.hist), a.nlabel)
            body(); q_end = list(lg.q)
            a.lines, a.hist, a.nlabel = save
            assert q_end[-16:] == q0[-16:], (q_end, q0)
            lg.q = q_end
            def slow(lbl, back, addr, off):
                a(f"{lbl}:\nds_read_b32 v{vF}, v{addr} offset:{off}\ns_waitcnt lgkmcnt(0)\nv_cmp_ne_u32 vcc, 0, v{vF}\ns_cmp_eq_u64 vcc, 0\ns_cbranch_scc0 {back}\ns_branch {lbl}")
            a(f"s_branch {LOOP}")
            slow(L("sp2"), L("ok2"), 1, O_SEL)
            slow(L("sp3"), L("ok3"), cXFR, O_XF)
            slow(L("sp4"), L("ok4"), cXFR, O_XF + 4)
            a(f"{LOOP}:")
            body()
            assert lg.q == q_end, (lg.q, q_end)
            a(f"s_branch {LOOP}")
            a.hist = []
            a(f"{LAST}:")
            lg.q = list(qmid)
            fl = {m: [] for m in range(24)}
            fl[0] = [after("flag", f"v_cmp_ne_u32 vcc, 0, v{vF}"), after(("w", 5), "s_barrier")]
            fl[1] = [f"s_cmp_eq_u64 vcc, 0\ns_cbranch_scc1 {L('sp2')}\n{L('ok2')}:"]
            for c in range(4): fl[2 + c].append(ds(f"ds_write_b128 v{cCSW}, {vr(acc(0,c),4)} offset:{64*c}", "csw"))
            for p in range(3): fl[2 + p].append(ds(f"ds_read2_b32 {vr(RSQ+2*p,2)}, v{cRSQ} offset0:{32*p} offset1:{32*p+16}", "rsq"))
            MMR = lambda p: ds(f"ds_read2_b64 {vr(mm(2*p),4)}, v{cMM} offset0:{32*p} offset1:{32*p+16}", "st")
            fl[5].append(MMR(2)); fl[6].append(MMR(1)); fl[16].append(MMR(0))
            for e in range(2): fl[6 + e].append(ds(f"ds_write_b32 v{cCVW}, v{acc(0,4+e)} offset:{256+64*e}", "csw"))
            fl[7].append(ds(f"ds_write_b32 v{cXFW}, v{cONE} offset:{O_XF}", "csw"))
            for t, m in enumerate((8, 9, 10, 12, 13, 14)):
                fl[m] += [ds(f"ds_read_b32 v{rk(t)}, v{cRK0} offset:{64*t}", "st"), ds(f"ds_read_b32 v{rk(t)+1}, v{cRK1} offset:{64*t}", "st")]
            fl[11].append(ds(f"ds_read_b32 v{vF}, v{cXFR} offset:{O_XF}", "flag"))
            fl[15].append(after("flag", f"v_cmp_eq_u32 vcc, 1, v{vF}\nv_mul_f32 v{RSQ}, s61, v{RSQ}"))
            fl[16].append(f"s_cmp_eq_u64 vcc, 0\ns_cbranch_scc1 {L('sp3')}\n{L('ok3')}:")
            for n, c in enumerate((2, 3, 0, 1)):
                fl[17 + n] += [ds(f"ds_read_b128 {vr(csq(c),4)}, v{cCSR} offset:{64*c}", ("cs", c)), f"v_mul_f32 v{RSQ+1+n}, s61, v{RSQ+1+n}"]
            for e in range(2): fl[21 + e].append(ds(f"ds_read2_b32 {vr(CSV+2*e,2)}, v{cCVR} offset0:{64+16*e} offset1:{64+16*e}", "csv"))
            fl[21].append(f"v_mul_f32 v{RSQ+5}, s61, v{RSQ+5}")
            lg.wait(("w", 4))
            for n, (c, t) in enumerate([(4, 0), (5, 0)] + [(4, t) for t in range(1, 6)] + [(5, t) for t in range(1, 6)]):
                for h in range(2):
                    mf(c, t, h)
                    for f in fl[2 * n + h]: f() if callable(f) else a(f)
        else:
            xread(0, 0)
            for c in range(6):
                for i2 in range(2): wread(c, i2, 0)
            a("s_waitcnt lgkmcnt(8)")
            for t in range(1, 6): xread(t, 0)
            lg.q = []
            a("s_waitcnt lgkmcnt(2)")
            LOOP, OK, SP, LAST = L("loop"), L("ok"), L("spin"), L("last")
            BAR = self.bar
            def phase(h, fill, prefetch=True):
                nh = 1 - h
                wl = [(c, i2) for c in range(6) for i2 in range(2)] if prefetch else []
                pend = []
                lg.wait(("w", h, 5))
                for t in range(6):
                    lg.wait(("x", t))
                    for c in range(6):
                        w, x = vr(WF + h * 24 + c * 4, 4), vr(XF + 4 * t, 4)
                        A, B = (w, x) if c < 4 else (x, w)
                        a(f"v_mfma_f32_16x16x32_bf16 {vr(acc(t,c),4)}, {A}, {B}, {vr(acc(t,c),4)}")
                        if h == 1 and (t, c) == BAR:
                            lg.wait(("x", 5)); a("s_barrier")
                        elif h == 1 and (t, c) < BAR: pass
                        elif pend: xread(pend.pop(0), nh)
                        elif wl and c < 5 and ((h == 0 and t >= 1 and c % 2 == 0) or (h == 1 and (c % 2 == 0 or c == 3 and t < 4))):
                            cc, i2 = wl.pop(0); wread(cc, i2, nh)
                        for f in fill.get((t, c), []):
                            f() if callable(f) else a(f)
                    if prefetch:
                        if h == 1 and (t, 5) <= BAR: pend.append(t)
                        else: xread(t, nh)
                assert not wl and not pend
            def ds(txt, tag):
                def f():
                    a(txt); lg.add(tag)
                return f
            def after(tag, txt):
                def f():
                    lg.wait(tag); a(txt)
                return f
            f0 = {(0, 0): ["s_cmp_eq_u32 s45, 2\ns_cselect_b32 s47, s63, s62"], (0, 1): ["s_cselect_b32 s45, -1, s45\ns_add_u32 s45, s45, 1"],
                  (0, 2): [f"s_add_u32 s44, s44, 1\nv_add_u32 v{vXa}, s47, v{vXa}"],
                  (0, 3): [f"v_mad_i32_i24 v{vXh}, v{vMk}, s47, v{vXh}"], (4, 3): [ds(f"ds_read_b32 v{vF}, v1 offset:{O_SEL}", "flag")],
                  (5, 0): [f"v_add_u32 v{vWa}, s47, v{vWa}\nv_add_u32 v{vWa+1}, s47, v{vWa+1}"], (5, 4): ["s_cmp_eq_u32 s44, 16"]}
            f1 = {(0, 0): [f"v_add_u32 v{vXa+1}, s47, v{vXa+1}"], (0, 1): [f"v_mad_i32_i24 v{vXh+1}, v{vMk}, s47, v{vXh+1}"]}
            qmid = []
            def body():
                phase(0, f0)
                a(f"s_cbranch_scc1 {LAST}")
                qmid[:] = list(lg.q)
                phase(1, f1)
            save = (list(a.lines), list(a.hist), a.nlabel)
            body(); q_end = list(lg.q)
            a.lines, a.hist, a.nlabel = save
            assert q_end[-2:] == [("x", 4), ("x", 5)], q_end
            lg.q = q_end
            def slow(lbl, back, addr, off, val):
                a(f"{lbl}:\ns_cmp_lg_u32 s64, 0\ns_cbranch_scc1 {back}")
                a(f"ds_read_b32 v{vF}, v{addr} offset:{off}\ns_waitcnt lgkmcnt(0)\nv_cmp_ne_u32 vcc, 0, v{vF}\ns_cmp_eq_u64 vcc, 0\ns_cbranch_scc0 {back}\ns_branch {lbl}")
            a(f"s_branch {LOOP}")
            slow(L("sp2"), L("ok2"), 1, O_SEL, 0)
            slow(L("sp3"), L("ok3"), cXFR, O_XF, 1)
            slow(L("sp4"), L("ok4"), cXFR, O_XF + 4, 1)
            if self.lal is not None:
                a.raw(".p2align 6, 0")
                a.lines[-1] = ".p2alignl 6, 0xbf800000"
                for _ in range(self.lal): a.raw("    s_nop 0")
            a(f"{LOOP}:")
            body()
            assert lg.q == q_end, (lg.q, q_end)
            a(f"s_branch {LOOP}")
            a.hist = []
            a(f"{LAST}:")
            def sec(k, first=False):
                if self.dry:
                    if not first: a(f"s_cmp_lg_u32 s64, 0\ns_cbranch_scc1 {L('dryret')}")
                    if k < 4: a(f"{L('sec%d' % k)}:")
            sec(0, True)
            lg.q = list(qmid)
            st = []
            for p in range(3):
                st.append(ds(f"ds_read2_b64 {vr(MM+4*p,4)}, v{cMM} offset0:{32*p} offset1:{32*p+16}", "st"))
            for p in range(3):
                st.append(ds(f"ds_read2_b32 {vr(RSQ+2*p,2)}, v{cRSQ} offset0:{32*p} offset1:{32*p+16}", "rsq"))
            for t in range(6):
                st.append(ds(f"ds_read_b32 v{RK+2*t}, v{cRK0} offset:{64*t}", "st"))
                st.append(ds(f"ds_read_b32 v{RK+2*t+1}, v{cRK1} offset:{64*t}", "st"))
            fl = {(0, 0): [after("flag", f"v_cmp_ne_u32 vcc, 0, v{vF}")], (0, 1): ["s_cmp_eq_u64 vcc, 0"], BAR: [f"s_cbranch_scc1 {L('sp2')}\n{L('ok2')}:"]}
            slots = [(1, 2), (1, 2), (1, 3), (1, 3), (1, 4), (1, 4), (1, 5), (1, 5), (3, 1), (3, 1), (3, 2), (3, 2), (3, 3), (3, 3), (3, 4), (3, 4), (4, 0), (4, 1)]
            for f, sl in zip(st, slots): fl.setdefault(sl, []).append(f)
            for c in range(4): fl[(2, c)] = [ds(f"ds_write_b128 v{cCSW}, {vr(acc(0,c),4)} offset:{64*c}", "csw")]
            for e in range(2): fl[(2, 4 + e)] = [ds(f"ds_write_b32 v{cCVW}, v{acc(0,4+e)} offset:{256+64*e}", "csw")]
            fl[(3, 0)] = [ds(f"ds_write_b32 v{cXFW}, v{cONE} offset:{O_XF}", "csw")]
            fl[(3, 5)] = [ds(f"ds_read_b32 v{vF}, v{cXFR} offset:{O_XF}", "flag")]
            fl[(4, 2)] = [after("flag", f"v_cmp_eq_u32 vcc, 1, v{vF}")]
            fl[(4, 3)] = [f"v_mul_f32 v{RSQ}, s61, v{RSQ}\ns_cmp_eq_u64 vcc, 0"]
            fl[(4, 4)] = [f"s_cbranch_scc1 {L('sp3')}\n{L('ok3')}:"]
            for n, c in enumerate((2, 3, 0, 1)):
                fl[[(4, 5), (5, 0), (5, 1), (5, 2)][n]] = [ds(f"ds_read_b128 {vr(csq(c),4)}, v{cCSR} offset:{64*c}", ("cs", c)), f"v_mul_f32 v{RSQ+1+n}, s61, v{RSQ+1+n}"]
            for e in range(2):
                fl[(5, 3 + e)] = [ds(f"ds_read2_b32 {vr(CSV+2*e,2)}, v{cCVR} offset0:{64+16*e} offset1:{64+16*e}", "csv")]
            fl[(5, 3)].append(f"v_mul_f32 v{RSQ+5}, s61, v{RSQ+5}")
            phase(1, fl, prefetch=False)
        self.stamp(3)
        if self.stamps: a("s_memtime s[98:99]\ns_waitcnt lgkmcnt(0)\ns_mov_b32 s95, s98")
        if self.stamps: lg.q = []
        for t in (5, 4, 3, 2, 1, 0):
            a(f"ds_read_b128 {vr(M4+4*t,4)}, v{cM4} offset:{64*t}"); lg.add(("m4", t))
        NEG2 = "neg_lo:[0,1,0] neg_hi:[0,1,0]"
        def norm(t, c):
            d = acc(t, c)
            out = []
            for j in range(2):
                if c < 4: out.append(f"v_pk_fma_f32 {vr(d+2*j,2)}, {vr(csq(c)+2*j,2)}, {vr(mm(t),2)}, {vr(d+2*j,2)} {NEG2}")
                else: out.append(f"v_pk_fma_f32 {vr(d+2*j,2)}, {vr(M4+4*t+2*j,2)}, {vr(CSV+2*(c-4),2)}, {vr(d+2*j,2)} {NEG2}")
            dst = acc(t, c & ~1) + (c & 1) * 2
            for j in range(2): out.append(f"v_cvt_pk_bf16_f32 v{dst+j}, v{d+2*j}, v{d+2*j+1}")
            return out
        def norm2(t, c):
            x, y = norm(t, c), norm(t, c + 1)
            return x[:2] + y[:2] + x[2:] + y[2:]
        qop = lambda t: acc(t, 0)
        kop = lambda t: acc(t, 2) if t >= 0 else KP
        vop = lambda t, e: (acc(t, 4) if t >= 0 else VPV) + 2 * e
        def smm(t):
            a(f"v_mfma_f32_16x16x32_bf16 {vr(acc(t,1),4)}, {vr(kop(t-1),4)}, {vr(qop(t),4)}, 0")
            a(f"v_mfma_f32_16x16x32_bf16 {vr(acc(t,3),4)}, {vr(kop(t),4)}, {vr(qop(t),4)}, 0")
        lg.wait("st", ("cs", 3))
        for t in (4, 5):
            for i in norm2(t, 2): a(i)
        lg.wait("csv", ("m4", 5))
        for i in norm2(5, 4): a(i)
        a(f"ds_write_b128 v{cXCW}, {vr(acc(5,2),4)}\nds_write_b128 v{cXCW}, {vr(acc(5,4),4)} offset:1024\nds_write_b32 v{cXFW}, v{cONE} offset:{O_XF+4}")
        lg.add("w"); lg.add("w"); lg.add("w")
        for i in norm2(5, 0): a(i)
        sec(1)
        for t in (3, 2, 1, 0):
            for i in norm2(t, 2): a(i)
            smm(t + 2)
            for i in norm2(t + 1, 0): a(i)
            if t == 1:
                a(f"ds_read_b32 v{vF}, v{cXFR} offset:{O_XF+4}"); lg.add("flag")
        lg.wait("flag")
        a(f"v_cmp_eq_u32 vcc, 1, v{vF}")
        x = norm2(0, 0)
        for i in x[:4]: a(i)
        a(f"s_cmp_eq_u64 vcc, 0\ns_cbranch_scc1 {L('sp4')}\n{L('ok4')}:")
        a(f"ds_read_b128 {vr(KP,4)}, v{cXCH}\nds_read_b128 {vr(VPV,4)}, v{cXCH} offset:1024"); lg.add("rx"); lg.add("rx")
        smm(1)
        for i in x[4:]: a(i)
        sec(2)
        vfill = []
        for t in (4, 3, 2, 1, 0): vfill += norm2(t, 4)
        def select(t):
            P, C, D = acc(t, 1), acc(t, 3), acc(t, 1)
            a(f"v_cndmask_b32 v{P}, v{P}, v{P+1}, s[50:51]\nv_cndmask_b32 v{P+2}, v{P+2}, v{P+3}, s[50:51]")
            a(f"v_cndmask_b32 v{C}, v{C}, v{C+1}, s[50:51]\nv_cndmask_b32 v{C+2}, v{C+2}, v{C+3}, s[50:51]")
            a(f"v_cndmask_b32 v{D}, v{P}, v{C}, s[52:53]\nv_cndmask_b32 v{D+1}, v{P+2}, v{C+2}, s[54:55]")
            a(f"v_pk_mul_f32 {vr(D,2)}, {vr(D,2)}, {vr(rk(t),2)}")
            if t == 1:
                a(f"v_cndmask_b32 v{D}, v{D}, v{cNEG}, s[56:57]\nv_cndmask_b32 v{D+1}, v{D+1}, v{cNEG}, s[58:59]")
            a(f"v_max_f32 v{D+2}, v{D}, v{D+1}")
        select(5); select(4)
        lg.wait("rx")
        smm(0)
        for t in (3, 2, 1, 0): select(t)
        order = [5, 4, 3, 2, 1, 0]
        def fillv(n):
            for _ in range(n):
                if vfill: a(vfill.pop(0))
        def allreduce(op, post):
            R = [acc(t, 1) + 2 for t in range(6)]
            X0 = acc(0, 1) + 3
            fillv(2)
            for p in (2, 1, 0): a(f"v_permlane32_swap_b32 v{R[2*p]}, v{R[2*p+1]}")
            for p in (2, 1, 0): a(f"{op} v{R[2*p]}, v{R[2*p]}, v{R[2*p+1]}")
            a(f"v_mov_b32 v{X0}, v{R[0]}")
            a(f"v_permlane16_swap_b32 v{R[2]}, v{R[4]}")
            fillv(1)
            a(f"v_permlane16_swap_b32 v{R[0]}, v{X0}")
            a(f"{op} v{R[2]}, v{R[2]}, v{R[4]}\n{op} v{R[0]}, v{R[0]}, v{X0}")
            if post:
                post(R[2]); post(R[0]); fillv(1)
            a(f"v_mov_b32 v{R[4]}, v{R[2]}\nv_mov_b32 v{R[1]}, v{R[0]}")
            fillv(1)
            a(f"v_permlane16_swap_b32 v{R[2]}, v{R[4]}")
            a(f"v_permlane32_swap_b32 v{R[0]}, v{R[1]}")
            a(f"v_mov_b32 v{R[3]}, v{R[2]}\nv_mov_b32 v{R[5]}, v{R[4]}")
            fillv(1)
            a(f"v_permlane32_swap_b32 v{R[2]}, v{R[3]}\nv_permlane32_swap_b32 v{R[4]}, v{R[5]}")
        allreduce("v_max_f32", None)
        for t in (0, 1, 2, 3, 4, 5):
            D = acc(t, 1)
            a(f"v_mul_f32 v{D+2}, v{D+2}, v{RSQ+t}\nv_fma_f32 v{D}, v{D}, v{RSQ+t}, -v{D+2}\nv_fma_f32 v{D+1}, v{D+1}, v{RSQ+t}, -v{D+2}")
        for t in order:
            D = acc(t, 1)
            a(f"v_exp_f32 v{D}, v{D}\nv_exp_f32 v{D+1}, v{D+1}")
        sec(3)
        for t in order:
            D = acc(t, 1)
            a(f"v_add_f32 v{D+2}, v{D}, v{D+1}")
        vfill = [f"v_pk_mul_f32 {vr(acc(t,1),2)}, {vr(acc(t,1),2)}, {vr(rk(t),2)}" for t in order] + vfill
        allreduce("v_add_f32", lambda r: a(f"v_rcp_f32 v{r}, v{r}"))
        fillv(99)
        M16 = "v_mfma_f32_16x16x16_bf16"
        def pv(t):
            P = acc(t, 0)
            for e in range(2):
                o = vr(acc(t, 3 + 2 * e), 4)
                a(f"{M16} {o}, {vr(vop(t-1,e),2)}, {vr(P,2)}, 0")
            for e in range(2):
                o = vr(acc(t, 3 + 2 * e), 4)
                a(f"{M16} {o}, {vr(vop(t,e),2)}, {vr(P+2,2)}, {o}")
        def pp(t):
            D, P = acc(t, 1), acc(t, 0)
            a(f"v_mul_f32 v{D}, v{D}, v{D+2}\nv_mul_f32 v{D+1}, v{D+1}, v{D+2}\nv_cvt_pk_bf16_f32 v{D}, v{D}, v{D+1}")
            for k in range(4): a(f"v_perm_b32 v{P+k}, v{D}, v{D}, v{cSEL+k}")
        def ost(t):
            d = acc(t, 1)
            for e in range(2):
                s = acc(t, 3 + 2 * e)
                a(f"v_cvt_pk_bf16_f32 v{d+2*e}, v{s}, v{s+1}\nv_cvt_pk_bf16_f32 v{d+2*e+1}, v{s+2}, v{s+3}")
            a(f"buffer_store_dwordx4 {vr(d,4)}, v{cOST}, s[20:23], {'s%d' % (65+t) if t else '0'} offen sc1")
        DONE = L("cdone")
        pp(1); pp(2); pv(1); pp(3); pv(2)
        sec(4)
        pp(4); pv(3); ost(1); pp(5); pv(4); ost(2); pp(0); pv(5); ost(3); pv(0); ost(4); ost(5)
        a(f"s_cmp_eq_u32 s41, 0\ns_cbranch_scc1 {DONE}")
        ost(0)
        a(f"{DONE}:")
        self.stamp(4)
        a("s_mov_b64 exec, 1")
        if self.early: a(f"ds_add_u32 v1, v{cONE} offset:{O_EPI}")
        a(f"s_waitcnt vmcnt(0)\nds_add_rtn_u32 v3, v1, v{cONE} offset:{O_ARR}\ns_waitcnt lgkmcnt(0)")
        a(f"v_readfirstlane_b32 s42, v3\ns_cmp_lg_u32 s42, 3\ns_cbranch_scc1 {L('nfl')}")
        a(f"buffer_store_dword v{cONE}, v33, s[20:23], 0 offen {self.stfl}\n{L('nfl')}:\ns_mov_b64 exec, -1\ns_setprio 0")
        self.stamp(5)

    def moe(self):
        a, L, name, nomoe = self.a, self.L, self.name, self.nomoe
        a(f"{L('moe')}:")
        GU, WD, ACC, XS = 128, 64, 32, 16
        vT, vG, vD = 1, 5, 9
        a("s_load_dwordx8 s[64:71], s[0:1], 32")
        a("s_mov_b32 s60, 0x3a800000")
        a(f"v_lshlrev_b32 v13, 2, v0\nv_add_u32 v13, {MISC}, v13\nv_mov_b32 v14, 0\nv_cmp_lt_u32 vcc, {O_XF//4}, v0\nds_write_b32 v13, v14 offset:{L_UPD+2048-MISC}\nds_write_b32 v13, v14 offset:{O_SEL}\nv_cndmask_b32 v15, 0, 4, vcc\nds_write_b32 v13, v15")
        a("s_and_b32 s33, s28, 1\ns_lshl_b32 s33, s33, 10\ns_lshr_b32 s36, s28, 1\ns_lshl_b32 s36, s36, 8\ns_add_u32 s33, s33, s36")
        a("s_sub_u32 s36, s29, 24\ns_lshl_b32 s36, s36, 5\ns_add_u32 s33, s33, s36\ns_lshl_b32 s36, s3, 2\ns_add_u32 s33, s33, s36")
        a("s_mul_i32 s30, s28, 7\ns_add_u32 s30, s30, s29\ns_sub_u32 s30, s30, 24\ns_cmp_eq_u32 s29, 31\ns_cselect_b32 s30, 0, s30")
        a("s_lshl_b32 s45, s3, 14")
        for u in range(4):
            w_tr_laneaddr(a, vT + u, 0, 13, 14, u, 2048)
            a(f"v_add_u32 v{vT+u}, s45, v{vT+u}")
        a("s_mov_b32 s36, 7168")
        w_dma_laneoff(a, vG, 0, 13, 14, 36, True)
        a(f"s_lshl_b32 s36, s30, 7\ns_mul_i32 s37, s3, {128*7168}\ns_add_u32 s36, s36, s37\nv_add_u32 v{vG}, s36, v{vG}")
        for q in range(1, 4): a(f"v_add_u32 v{vG+q}, {(0,4,16,20)[q]*7168 - 1024*q}, v{vG}")
        a("s_mov_b32 s36, 2048")
        w_dma_laneoff(a, vD, 0, 13, 14, 36, False)
        a(f"s_lshl_b32 s36, s30, 17\ns_lshl_b32 s37, s3, 8\ns_add_u32 s36, s36, s37\nv_add_u32 v{vD}, s36, v{vD}")
        for q in range(1, 4): a(f"v_add_u32 v{vD+q}, {(0,16,8,24)[q]*2048 - 1024*q}, v{vD}")
        a("s_waitcnt lgkmcnt(0)")
        vm = LQ(a, "vmcnt", 63)
        srd(a, 76, 4, 0x400000); srd(a, 80, 64, 0x800); srd(a, 20, 74, WS_SIZE)
        if not self.zg:
            a(f"s_cmp_lg_u32 s2, {TOPWG}\ns_cbranch_scc1 {L('nz')}")
            if self.zf:
                srd(a, 24, 72, 0x100)
                a(f"s_lshl_b32 s36, s3, 10\ns_add_u32 s36, s36, {SFLAG_OFF:#x}\nv_lshlrev_b32 v13, 4, v0\nv_mov_b64 v[144:145], 0\nv_mov_b64 v[146:147], 0\nbuffer_store_dwordx4 v[144:147], v13, s[20:23], s36 offen sc1")
                a(f"v_mov_b32 v14, 1\ns_waitcnt vmcnt(0)\ns_barrier\ns_cmp_lg_u32 s3, 0\ns_cbranch_scc1 {L('nz1')}\ns_mov_b64 exec, 1\nbuffer_store_dword v14, v145, s[24:27], 0 offen sc1\ns_mov_b64 exec, -1\n{L('nz1')}:")
            a(f"s_lshl_b32 s36, s3, 12\ns_add_u32 s36, s36, {OFLAG_OFF:#x}\nv_lshlrev_b32 v13, 7, v0\nv_mov_b32 v15, 0\ns_mov_b32 exec_hi, 0\nbuffer_store_dword v15, v13, s[20:23], s36 offen sc1\ns_mov_b32 exec_hi, -1")
            if self.fw:
                srd(a, 24, 72, 0x100)
                a("v_lshlrev_b32 v13, 2, v0\n" + ("buffer_load_dword v144, v13, s[24:27], 0 offen sc1" if self.fw == 1 else "buffer_store_dword v14, v13, s[24:27], 0 offen sc1"))
            a(f"{L('nz')}:")
        if self.ew:
            n = self.n0
            srd(a, 8, 6, 0x600000)
            a(f"s_sub_u32 s36, s29, 24\ns_lshl_b32 s36, s36, 3\ns_add_u32 s36, s36, s3\ns_lshl_b32 s36, s36, 1\ns_and_b32 s37, s28, 1\ns_add_u32 s36, s36, s37\ns_mul_i32 s36, s36, {n*2048}")
            a("s_lshr_b32 s37, s28, 1\ns_lshl_b32 s37, s37, 9\ns_add_u32 s36, s36, s37\ns_add_u32 s36, s36, 393216")
            a(f"v_lshrrev_b32 v13, 2, v0\nv_lshlrev_b32 v13, 11, v13\nv_and_b32 v14, 3, v0\nv_lshl_add_u32 v13, v14, 7, v13\ns_mov_b64 exec, {(1 << (4*n)) - 1:#x}" if 4*n <= 31 else
              f"v_lshrrev_b32 v13, 2, v0\nv_lshlrev_b32 v13, 11, v13\nv_and_b32 v14, 3, v0\nv_lshl_add_u32 v13, v14, 7, v13\ns_mov_b32 exec_hi, {(1 << (4*n-32)) - 1:#x}")
            a("buffer_load_dword v15, v13, s[8:11], s36 offen\ns_mov_b64 exec, -1")
        stats_loads(a, vm, 76, 80, 33, self.rfl)
        srd(a, 8, 66, 1024 * 7168); srd(a, 12, 68, 1024 * 7168); srd(a, 16, 70, 3584 * 2048); srd(a, 24, 72, 0x100)
        if self.swp:
            a(f"s_bitcmp1_b32 {'s3' if self.swp == 1 else 's30'}, 0\ns_cselect_b32 s8, s68, s66\ns_cselect_b32 s9, s69, s67\ns_cselect_b32 s12, s66, s68\ns_cselect_b32 s13, s67, s69\ns_cselect_b32 s61, 0x1000, 0")
        a("s_cmp_eq_u32 s29, 31\ns_cselect_b32 s18, 0, s18")
        if self.zf: a("v_mov_b32 v145, 0\nv_mov_b32 v144, 0")
        if self.zf and self.zl and not self.zg:
            a(f"s_cmp_lg_u32 s2, {TOPWG}\ns_cbranch_scc1 {L('nz2')}\ns_waitcnt vmcnt(11)\ns_barrier\ns_cmp_lg_u32 s3, 0\ns_cbranch_scc1 {L('nz2')}")
            a(f"v_mov_b32 v146, 1\ns_mov_b64 exec, 1\nbuffer_store_dword v146, v145, s[24:27], 0 offen sc1\ns_mov_b64 exec, -1\n{L('nz2')}:")
        SEQ = [4, 5, 0, 1, 2, 3]
        def issue(k):
            c, buf = SEQ[k], (k & 1) * 8192
            for p in range(2):
                a(f"s_add_u32 m0, s45, {buf+p*4096}")
                if c < 4:
                    a(f"s_mov_b32 s46, {((c&1)*64+p*32)*7168}")
                    for q in range(4):
                        a(f"buffer_load_dwordx4 v{vG+q}, {sr(8+4*(c>>1),4)}, s46 offen offset:{1024*q} {self.moent} lds"); vm.add(("c", k))
                else:
                    a(f"s_mov_b32 s46, {p*32*2048+(c-4)*128}")
                    for q in range(4):
                        a(f"buffer_load_dwordx4 v{vD+q}, s[16:19], s46 offen offset:{1024*q} {self.moent} lds"); vm.add(("c", k))
        gu = lambda mat, s, ft: GU + ((mat * 4 + s) * 4 + ft) * 4
        wd = lambda s2, ct: WD + (s2 * 8 + ct) * 4
        def proc(k):
            vm.wait(("c", k))
            c, buf = SEQ[k], (k & 1) * 8192
            n = 0
            for h in range(2):
                for u in range(4):
                    r = gu(c >> 1, (c & 1) * 2 + h, u) if c < 4 else wd(h, (c - 4) * 4 + u)
                    for i2 in range(2):
                        a(f"ds_read_b64_tr_b16 {vr(r+2*i2,2)}, v{vT+u} offset:{buf+h*4096+i2*1024}")
                        n += 1
                        if n == 12: a("s_waitcnt lgkmcnt(8)")
            a("s_waitcnt lgkmcnt(0)")
        def wchunk(vt, vd, srdb=80):
            srd(a, srdb, 6, 0 if self.notouch & 1 else 0x600000)
            a("s_lshl_b32 s37, s36, 1\ns_and_b32 s38, s28, 1\ns_add_u32 s37, s37, s38\ns_lshl_b32 s37, s37, 15\ns_lshr_b32 s38, s28, 1\ns_lshl_b32 s38, s38, 9\ns_add_u32 s37, s37, s38\ns_add_u32 s37, s37, 393216")
            a(f"v_lshrrev_b32 v{vt}, 2, v0\nv_lshlrev_b32 v{vt}, 11, v{vt}\nv_and_b32 v14, 3, v0\nv_lshl_add_u32 v{vt}, v14, 7, v{vt}\nbuffer_load_dword v{vd}, v{vt}, {sr(srdb,4)}, s37 offen")
        def spare_chunk(base, lbl):
            if self.sp3:
                a(f"s_cmp_eq_u32 s28, {TOPWG & 7}\ns_cselect_b32 s36, 30, 31\ns_cmp_lg_u32 s29, s36\ns_cbranch_scc1 {lbl}\ns_add_u32 s36, s3, {base}")
            else:
                a(f"s_cmp_lg_u32 s29, 31\ns_cbranch_scc1 {lbl}\ns_add_u32 s36, s3, {base}")
            wchunk(13, 200)
            a(f"{lbl}:")
        ZL = "buffer_load_dword v144, v145, s[24:27], 0 offen sc1"
        def first():
            issue(0)
            if not self.sp1 and not self.sp2: spare_chunk(self.c1, L("sc0"))
        (stats_fast if self.fst else stats_compute)(a, vm, 33, first)
        if self.zf: a(f"s_cmp_lg_u32 s3, 0\ns_cbranch_scc1 {L('nzl')}\n{ZL}\n{L('nzl')}:")
        a(f"v_lshlrev_b32 v16, 2, v23\nv_lshlrev_b32 v17, 3, v23\ns_mov_b32 s46, {MR_OFF:#x}")
        a("s_mov_b32 exec_lo, 0x10001\ns_mov_b32 exec_hi, 0x10001")
        a("buffer_store_dword v22, v16, s[20:23], 0 offen sc1"); vm.add("st")
        a("buffer_store_dwordx2 v[20:21], v17, s[20:23], s46 offen sc1"); vm.add("st")
        a("s_mov_b64 exec, -1")
        issue(1)
        if self.sp1 and not self.sp2: spare_chunk(self.c1, L("sc0"))
        a(f"s_cmp_lg_u32 s29, 31\ns_cbranch_scc1 {L('sc1')}\ns_waitcnt vmcnt({1 if self.sp1 and not self.sp2 else 0})\ns_cmp_lg_u32 s2, {TOPWG}\ns_cbranch_scc1 {L('sc1')}\ns_waitcnt vmcnt(0)\n{L('sc1')}:")
        if self.sgate:
            a(f"s_cmp_lg_u32 s29, 31\ns_cbranch_scc1 {L('nsg')}\ns_add_u32 s36, s28, 3\ns_and_b32 s36, s36, 7\ns_cmp_eq_u32 s36, 7\ns_cbranch_scc1 {L('nsg')}")
            a(f"s_mul_i32 s37, s28, 7\ns_add_u32 s36, s36, s37\ns_lshl_b32 s36, s36, 7\ns_mul_i32 s37, s3, {128*7168}\ns_add_u32 s36, s36, s37\ns_add_u32 s37, s36, {64*7168}\ns_mov_b32 s38, 7168\nv_mul_lo_u32 v16, v0, s38")
            a(f"buffer_load_dword v40, v16, s[8:11], s36 offen\nbuffer_load_dword v41, v16, s[8:11], s37 offen\n{L('nsg')}:")
        a("s_sub_u32 s47, s2, 192\ns_lshl_b32 s47, s47, 1\nv_mov_b32 v13, s47\nv_mov_b32 v15, 1")
        proc(0)
        if self.i2e:
            a(f"s_cmp_eq_u32 s29, 31\ns_cbranch_scc1 {L('ni2')}\ns_cmp_lt_u32 s3, {self.i2e}\ns_cbranch_scc1 {L('ni2')}")
            q = list(vm.q); issue(2); a("s_waitcnt vmcnt(16)"); vm.q = q
            a(f"s_branch {L('ni3')}\n{L('ni2')}:")
        vm.wait("st")
        if self.i2e: a(f"{L('ni3')}:")
        a("s_barrier")
        a(f"s_cmp_lg_u32 s3, 0\ns_cbranch_scc1 {L('na')}")
        if self.zf:
            self.gpoll(ZL, 144, "v_cmp_ne_u32 vcc, 0, v144", 47, 8, preloaded=True)
            a(f"v_lshlrev_b32 v13, 6, v13\nv_add_u32 v13, {SFLAG_OFF:#x}, v13\ns_mov_b64 exec, 1\nbuffer_store_dword v15, v13, s[20:23], 0 offen sc1\ns_mov_b64 exec, -1\n{L('na')}:")
        else:
            a(f"s_mov_b64 exec, 1\nbuffer_store_short v15, v13, s[24:27], 0 offen {self.stfl}\ns_mov_b64 exec, -1\n{L('na')}:")
        if self.fb2: a("s_barrier")
        self.stamp(8)
        if self.sp2:
            a(f"s_cmp_eq_u32 s2, {TOPWG}\ns_cbranch_scc1 {L('sq0')}\ns_cmp_eq_u32 s2, {TOPWG-8}\ns_cbranch_scc1 {L('sq1')}\ns_cmp_lg_u32 s29, 31\ns_cbranch_scc1 {L('sq0')}\n{L('sq1')}:\ns_add_u32 s36, s3, {self.c1}")
            wchunk(13, 15)
            a(f"{L('sq0')}:")
        if self.x5:
            a(f"s_cmp_lg_u32 s28, {TOPWG & 7}\ns_cbranch_scc1 {L('nuc')}\ns_cmp_ge_u32 s29, 30\ns_cbranch_scc1 {L('nuc')}\ns_sub_u32 s36, 7, s3\ns_mul_i32 s36, s36, 6\ns_add_u32 s36, s36, s29\ns_add_u32 s36, s36, {self.c1+32-24}\ns_cmp_ge_u32 s36, {self.c1+46}\ns_cbranch_scc1 {L('nuc')}")
            wchunk(13, 15)
        elif self.x4:
            a(f"s_cmp_lg_u32 s2, {TOPWG-8}\ns_cbranch_scc1 {L('nuc')}\ns_cmp_eq_u32 s3, 0\ns_cbranch_scc1 {L('nuc')}\ns_add_u32 s36, s3, {self.c1+31}")
            wchunk(13, 15)
            a(f"s_add_u32 s36, s3, {self.c1+38}")
            wchunk(13, 15)
        elif not self.bigt:
            a(f"s_cmp_eq_u32 s29, 31\ns_cbranch_scc1 {L('nuc')}")
            a(f"s_sub_u32 s36, s29, 24\ns_add_u32 s37, s28, 3\ns_and_b32 s37, s37, 7\ns_cmp_eq_u32 s36, s37\ns_cbranch_scc1 {L('nuc')}\ns_cmp_gt_u32 s36, s37\ns_subb_u32 s36, s36, 0")
            a(f"s_cmp_eq_u32 s37, 7\ns_cselect_b32 s37, 7, 6\ns_cselect_b32 s38, 78, 64\ns_sub_u32 s46, 7, s3\ns_mul_i32 s37, s37, s46\ns_add_u32 s36, s36, s37\ns_add_u32 s36, s36, {64 if self.tb else 40}\ns_cmp_ge_u32 s36, s38\ns_cbranch_scc1 {L('nuc')}")
            wchunk(13, 15)
        a(f"{L('nuc')}:\nv_and_b32 v13, 7, v0\nv_lshlrev_b32 v13, 2, v13")
        a(f"s_cmp_eq_u32 s29, 31\ns_cbranch_scc1 {L('spare')}")
        if self.i2e: a(f"s_cmp_ge_u32 s3, {self.i2e}\ns_cbranch_scc1 {L('ni4')}")
        issue(2)
        if self.i2e: a(f"{L('ni4')}:")
        proc(1); issue(3)
        proc(2); issue(4)
        proc(3)
        SELLOAD = f"buffer_load_dword v24, v13, s[24:27], 0 offen offset:128 {self.pollfl}"
        if self.mp == 0:
            a(SELLOAD); vm.add("poll")
            issue(5)
            proc(4)
            vm.wait("poll")
            self.gpoll(SELLOAD, 24, "v_cmp_ne_u32 vcc, 0, v24", 47, self.msl, preloaded=True)
        elif self.mp == 3:
            SD = f"s_mov_b32 m0, {MISC+O_SEL}\ns_mov_b32 s46, 128\nbuffer_load_dword v13, s[24:27], s46 offen {self.pollfl} lds"
            a(f"v_add_u32 v15, {MISC+O_SEL}, v13\ns_cmp_lg_u32 s3, 0\ns_cbranch_scc1 {L('np1')}\n{SD}\n{L('np1')}:")
            issue(5)
            proc(4)
            a(f"s_mov_b32 s47, 0\n{L('sl1')}:\nds_read_b32 v24, v15\ns_waitcnt lgkmcnt(0)\nv_cmp_ne_u32 vcc, 0, v24\ns_cmp_eq_u64 vcc, -1\ns_cbranch_scc1 {L('sl2')}")
            a(f"s_add_u32 s47, s47, 1\ns_cmp_lt_u32 s47, {POLL_MAX:#x}\ns_cbranch_scc0 {L('sl2')}\ns_sleep {self.msl}\ns_cmp_lg_u32 s3, 0\ns_cbranch_scc1 {L('sl1')}")
            a(f"s_waitcnt vmcnt(40)\n{SD}\ns_branch {L('sl1')}\n{L('sl2')}:")
        elif self.mp == 1:
            issue(5)
            proc(4)
            self.gpoll(SELLOAD, 24, "v_cmp_ne_u32 vcc, 0, v24", 47, self.msl)
        else:
            a(f"v_mov_b32 v24, 0\ns_cmp_lt_u32 s3, 4\ns_cbranch_scc1 {L('np1')}\n{SELLOAD}\n{L('np1')}:")
            issue(5)
            proc(4)
            self.gpoll(SELLOAD, 24, "v_cmp_ne_u32 vcc, 0, v24", 47, self.msl, preloaded=True)
        a(f"v_or_b32 v12, 0x800, v24\nv_add_u32 v15, {MISC+O_SEL}, v13")
        a("v_and_b32 v25, 0x7ff, v24\nv_sub_u32 v25, 0x7ff, v25")
        a("v_lshrrev_b32 v13, 4, v0\nv_lshlrev_b32 v13, 4, v13\nv_lshl_add_u32 v13, v25, 11, v13\nv_bfe_u32 v14, v0, 3, 1\nv_lshl_add_u32 v13, v14, 7, v13\ns_lshl_b32 s36, s3, 8")
        a(f"v_lshlrev_b32 v14, 3, v25\ns_mov_b32 s46, {MR_OFF:#x}")
        a(f"buffer_load_dwordx2 v[{vG+1}:{vG+2}], v14, s[20:23], s46 offen sc1"); vm.add("mr")
        for s in range(2):
            a(f"buffer_load_dwordx4 {vr(XS+4*s,4)}, v13, s[76:79], s36 offen offset:{64*s}"); vm.add(("xs", s))
        self.stamp(9)
        proc(5)
        a(f"v_lshl_add_u32 v13, v0, 4, s45")
        a("s_and_b32 s36, s3, 3\ns_lshl_b32 s37, s36, 10\nv_lshl_add_u32 v14, v0, 4, s37")
        a(f"s_lshl_b32 s37, s36, 9\ns_add_u32 s37, s37, {M_H}\nv_lshl_add_u32 v8, v0, 3, s37")
        a(f"v_and_b32 v9, 0x37, v0\nv_lshlrev_b32 v9, 3, v9\nv_add_u32 v9, {M_H}, v9")
        a("v_and_b32 v10, 7, v0\nv_lshlrev_b32 v10, 12, v10\nv_bfe_u32 v11, v0, 3, 1\nv_lshl_add_u32 v10, v11, 6, v10\nv_lshrrev_b32 v11, 4, v0\nv_lshl_add_u32 v10, v11, 4, v10")
        a(f"s_lshl_b32 s36, s30, 15\ns_lshl_b32 s37, s3, 9\ns_add_u32 s36, s36, s37\ns_add_u32 s36, s36, {PART_OFF:#x}\nv_add_u32 v10, s36, v10")
        a("s_mov_b32 s50, 0xff00ff00\ns_mov_b32 s51, 0xff00ff00")
        vm.wait(("xs", 0))
        a("v_mov_b32 v4, v7\nv_mov_b32 v5, v7\nv_mov_b32 v7, v6")
        TP = XS + 8
        def nrm(s):
            X = XS + 4 * s
            for j in range(4): a(f"v_lshlrev_b32 v{TP+2*j}, 16, v{X+j}\nv_and_b32 v{TP+2*j+1}, s39, v{X+j}")
            for j in range(4): a(f"v_pk_add_f32 {vr(TP+2*j,2)}, {vr(TP+2*j,2)}, v[6:7] neg_lo:[0,1] neg_hi:[0,1]")
            for j in range(4): a(f"v_cvt_pk_bf16_f32 v{X+j}, v{TP+2*j}, v{TP+2*j+1}")
            for j in range(4): a(f"v_lshlrev_b32 v{TP+2*j}, 16, v{X+j}\nv_and_b32 v{TP+2*j+1}, s39, v{X+j}")
            for j in range(4): a(f"v_pk_mul_f32 {vr(TP+2*j,2)}, {vr(TP+2*j,2)}, v[4:5]")
            for j in range(4): a(f"v_cvt_pk_bf16_f32 v{X+j}, v{TP+2*j}, v{TP+2*j+1}")
        def gumm(s):
            for mat in range(2):
                for ft in range(4):
                    d = vr(ACC + (mat * 4 + ft) * 4, 4)
                    a(f"v_mfma_f32_16x16x32_bf16 {d}, {vr(gu(mat,s,ft),4)}, {vr(XS+4*s,4)}, {d if s else '0'}")
        nrm(0); gumm(0)
        vm.wait(("xs", 1))
        nrm(1)
        for r in range(8): a(f"v_mov_b32_dpp v{XS+8+r}, v{XS+r} row_ror:8 {DPP}")
        gumm(1); gumm(2); gumm(3)
        a("ds_write_b32 v15, v12")
        if self.swp:
            a("v_add_u32 v11, s61, v13\nv_xor_b32 v13, 0x1000, v11")
            for k in range(8): a(f"ds_write_b128 v{11 if k < 4 else 13}, {vr(ACC+4*k,4)} offset:{1024*(k&3)}")
        else:
            for k in range(8): a(f"ds_write_b128 v13, {vr(ACC+4*k,4)} offset:{1024*k}")
        a("s_waitcnt lgkmcnt(0)\ns_barrier")
        self.stamp(6)
        NR = L("nored")
        a(f"s_lshl_b32 s56, s30, 7\ns_add_u32 s56, s56, {PFLAG_OFF:#x}\ns_mov_b32 s59, 0")
        a(f"s_cmp_ge_u32 s3, 4\ns_cbranch_scc1 {NR}")
        R = GU
        a("v_add_u32 v15, 0x10000, v14")
        for mat in range(2):
            for w in range(8):
                a(f"ds_read_b128 {vr(R+(mat*8+w)*4,4)}, v{14+(w>>2)} offset:{(w&3)*16384+mat*4096}")
            if mat == 0: a("s_waitcnt lgkmcnt(4)")
        for mat in range(2):
            a(f"s_waitcnt lgkmcnt({8 if mat == 0 else 0})")
            b = R + mat * 32
            for st in (16, 8, 4):
                for k in range(0, st, 2):
                    a(f"v_pk_add_f32 {vr(b+k,2)}, {vr(b+k,2)}, {vr(b+st+k,2)}")
        for mat in range(2):
            b = R + mat * 32
            for j in range(2): a(f"v_cvt_pk_bf16_f32 v{b+8+j}, v{b+2*j}, v{b+2*j+1}")
            for j in range(2): a(f"v_lshlrev_b32 v{b+2*j}, 16, v{b+8+j}\nv_and_b32 v{b+2*j+1}, s39, v{b+8+j}")
        g, u = R, R + 32
        for r in range(4): a(f"v_mul_f32 v{g+4+r}, 0xbfb8aa3b, v{g+r}")
        for r in range(4): a(f"v_exp_f32 v{g+4+r}, v{g+4+r}")
        for r in range(4): a(f"v_add_f32 v{g+4+r}, 1.0, v{g+4+r}")
        for r in range(4): a(f"v_rcp_f32 v{g+4+r}, v{g+4+r}")
        for r in range(4): a(f"v_mul_f32 v{g+r}, v{g+r}, v{g+4+r}")
        for j in range(2): a(f"v_cvt_pk_bf16_f32 v{g+8+j}, v{g+2*j}, v{g+2*j+1}")
        for j in range(2): a(f"v_lshlrev_b32 v{g+2*j}, 16, v{g+8+j}\nv_and_b32 v{g+2*j+1}, s39, v{g+8+j}")
        for j in range(2): a(f"v_pk_mul_f32 {vr(g+2*j,2)}, {vr(g+2*j,2)}, {vr(u+2*j,2)}")
        for j in range(2): a(f"v_cvt_pk_bf16_f32 v{g+8+j}, v{g+2*j}, v{g+2*j+1}")
        a(f"ds_write_b64 v8, {vr(g+8,2)}\ns_waitcnt lgkmcnt(0)")
        self.stamp(2)
        a(f"s_branch {L('hb')}\n{NR}:\ns_sub_u32 s3, s3, 4\ns_mov_b32 s59, 1")
        self.p2decode()
        self.p2a(False)
        self.woaddr()
        if self.wfirst:
            a("s_barrier")
            self.wopart(48, 3)
            if self.wfirst > 1: self.wopart(16, 2)
            a(f"s_branch {L('hb2')}")
        a(f"{L('hb')}:\ns_barrier\n{L('hb2')}:")
        self.stamp(3)
        for ft in range(4): a(f"ds_read_b64 {vr(XS+2*ft,2)}, v9 offset:{512*ft}")
        a("s_waitcnt lgkmcnt(0)")
        for s2 in range(2):
            for ct in range(8):
                d = vr(ACC + ct * 4, 4)
                a(f"v_mfma_f32_16x16x32_bf16 {d}, {vr(wd(s2,ct),4)}, {vr(XS+4*s2,4)}, {d if s2 else '0'}")
        for p in range(4):
            d = ACC + 8 * p
            for r in range(4): a(f"v_cndmask_b32 v{d+r}, v{d+r}, v{d+4+r}, s[50:51]")
            a(f"buffer_store_dwordx4 {vr(d,4)}, v10, s[20:23], 0 offen offset:{128*p} sc1")
        a(f"v_mov_b32 v1, {MISC}\ns_cmp_lg_u32 s59, 0\ns_cbranch_scc1 {L('p2d')}")
        self.stamp(4)
        a(f"{L('mlo')}:\nv_mov_b32 v2, s56\nv_mov_b32 v3, 1\ns_waitcnt vmcnt(0)")
        self.stamp(5)
        a("s_barrier")
        self.stamp(7)
        a(f"s_cmp_lg_u32 s3, 0\ns_cbranch_scc1 {L('help2')}\ns_mov_b64 exec, 1\nbuffer_store_dword v3, v2, s[20:23], 0 offen {self.stfl}\ns_mov_b64 exec, -1\ns_branch {L('help2')}")
        a.hist = []
        a(f"{L('spare')}:")
        a(f"v_add_u32 v29, {MISC+O_SEL}, v13\nv_mov_b32 v28, v13")
        a(f"s_cmp_eq_u32 s2, {TOPWG}\ns_cbranch_scc1 {L('top8')}")
        a(f"s_cmp_lg_u32 s3, 0\ns_cbranch_scc1 {L('sdone')}")
        self.gpoll(SELLOAD, 24, "v_cmp_ne_u32 vcc, 0, v24", 47, 32)
        a(f"s_branch {L('swr')}")
        a(f"{L('top8')}:")
        a("v_and_b32 v13, 31, v0\nv_lshlrev_b32 v13, 2, v13\ns_mov_b32 s48, 0x10001")
        a(f"s_lshl_b32 s36, s3, 10\nv_lshl_add_u32 v14, v0, 4, s36")
        a(f"s_lshl_b32 s36, s3, 5\nv_add_u32 v26, s36, v28\nv_add_u32 v26, {M_CAND}, v26")
        a(f"v_lshlrev_b32 v27, 2, v0\nv_add_u32 v27, {M_CAND}, v27")
        a(f"v_mov_b32 v30, 0\nds_write_b32 v27, v30 offset:1024\nds_write_b32 v27, v30 offset:1536")
        a(f"v_lshrrev_b32 v30, 4, v0\ns_lshl_b32 s36, s3, 2\nv_add_u32 v30, s36, v30\nv_lshlrev_b32 v30, 2, v30\nv_add_u32 v30, {M_GM}, v30")
        a(f"v_add_u32 v31, {M_GM}, v13\nv_lshrrev_b32 v32, 5, v0\nv_lshlrev_b32 v32, 6, v32\nv_add_u32 v32, {M_GM}, v32\nv_mov_b32 v33, {M_C2}\nv_mov_b32 v34, 1\ns_waitcnt lgkmcnt(0)")
        a(f"s_cmp_lg_u32 s3, 0\ns_cbranch_scc1 {L('spd')}")
        if self.zf:
            a(f"v_lshlrev_b32 v35, 7, v0\nv_add_u32 v35, {SFLAG_OFF:#x}, v35")
            self.gpoll(self.pl(15, 35, "s[20:23]"), 15, "v_cmp_ne_u32 vcc, 0, v15", 47, 4, diag=True)
        else:
            self.gpoll(self.pl(15, 13, "s[24:27]"), 15, "v_cmp_eq_u32 vcc, s48, v15", 47, 8, diag=True)
        a(f"{L('spd')}:\ns_barrier")
        self.stamp(9)
        a("buffer_load_dwordx4 v[16:19], v14, s[20:23], 0 offen sc1\ns_mov_b32 s48, 0\ns_waitcnt vmcnt(0)")
        LV, RD, TD = L("lv"), L("rd"), L("td")
        def rank16(own, base, cnt):
            for b in range(4):
                for k in range(4): a(f"v_cmp_gt_u32 s[{52+2*k}:{53+2*k}], v{base+4*b+k}, v{own}")
                for k in range(4): a(f"v_addc_co_u32 v{cnt}, vcc, 0, v{cnt}, s[{52+2*k}:{53+2*k}]")
        a("v_max3_u32 v20, v16, v17, v18\nv_max_u32 v20, v20, v19")
        for pat in ("quad_perm:[1,0,3,2]", "quad_perm:[2,3,0,1]", "row_half_mirror", "row_mirror"):
            a(f"v_max_u32_dpp v20, v20, v20 {pat} {DPP}")
        a("ds_write_b32 v30, v20\nv_mov_b32 v21, 0\ns_waitcnt lgkmcnt(0)\ns_barrier")
        a("ds_read_b32 v20, v31")
        for b in range(4): a(f"ds_read_b128 {vr(40+4*b,4)}, v32 offset:{16*b}")
        a("s_waitcnt lgkmcnt(0)")
        rank16(20, 40, 21)
        a("v_mov_b32 v22, v21\nv_permlane32_swap_b32 v21, v22\nv_add_u32 v21, v21, v22\nv_cmp_eq_u32 vcc, 7, v21\ns_ff1_i32_b64 s46, vcc\nv_readlane_b32 s46, v20, s46")
        for k in range(4): a(f"v_cmp_le_u32 s[{52+2*k}:{53+2*k}], s46, v{16+k}")
        for k in range(4): a(f"s_mov_b64 exec, s[{52+2*k}:{53+2*k}]\nds_add_rtn_u32 v{20+k}, v33, v34 offset:512")
        a("s_mov_b64 exec, -1\ns_waitcnt lgkmcnt(0)")
        for k in range(4): a(f"v_min_u32 v{20+k}, 64, v{20+k}\nv_lshl_add_u32 v{20+k}, v{20+k}, 2, v33")
        for k in range(4): a(f"s_mov_b64 exec, s[{52+2*k}:{53+2*k}]\nds_write_b32 v{20+k}, v{16+k}")
        a("s_mov_b64 exec, -1\ns_waitcnt lgkmcnt(0)\ns_barrier")
        a("ds_read_b32 v21, v33 offset:512\nds_read_b32 v24, v27 offset:1024")
        for b in range(4): a(f"ds_read_b128 {vr(40+4*b,4)}, v33 offset:{16*b}")
        a(f"s_waitcnt lgkmcnt(0)\nv_readfirstlane_b32 s47, v21\nv_mov_b32 v21, 0\ns_cmp_gt_u32 s47, 64\ns_cbranch_scc1 {LV}")
        a(f"s_cmp_lg_u32 s3, 0\ns_cbranch_scc1 {L('sd255')}\ns_mov_b32 s46, 16")
        a(f"{L('rk')}:")
        rank16(24, 40, 21)
        a(f"s_cmp_ge_u32 s46, s47\ns_cbranch_scc1 {L('rkd')}\nv_add_u32 v33, 64, v33\ns_add_u32 s46, s46, 16")
        for b in range(4): a(f"ds_read_b128 {vr(40+4*b,4)}, v33 offset:{16*b}")
        a(f"s_waitcnt lgkmcnt(0)\ns_branch {L('rk')}")
        a(f"{L('rkd')}:\nv_cmp_gt_u32 vcc, 8, v21\nv_cmp_gt_u32 s[52:53], s47, v0\nv_lshlrev_b32 v28, 2, v21\nv_or_b32 v24, 0x800, v24\nv_add_u32 v29, {MISC+O_SEL}, v28")
        a(f"s_and_b64 exec, vcc, s[52:53]\ns_branch {L('tst')}")
        a(f"{LV}:\ns_mov_b32 s46, 0\ns_mov_b32 s50, 0x01010101\ns_mov_b32 s51, 0x01010101\ns_mov_b32 s47, 0")
        a(f"{RD}:")
        for k in range(4): a(f"v_subrev_u32 v{20+k}, s46, v{16+k}")
        a("v_max3_u32 v20, v20, v21, v22\nv_max_u32 v20, v20, v23")
        for pat in ("quad_perm:[1,0,3,2]", "quad_perm:[2,3,0,1]", "row_half_mirror", "row_mirror"):
            a(f"v_max_u32_dpp v20, v20, v20 {pat} {DPP}")
        for k in range(4): a(f"v_readlane_b32 s{52+k}, v20, {16*k}")
        a("s_max_u32 s52, s52, s53\ns_max_u32 s54, s54, s55\ns_max_u32 s52, s52, s54\ns_add_u32 s46, s46, s52")
        a("s_mov_b64 exec, s[50:51]\nv_mov_b32 v24, s46\ns_mov_b64 exec, -1\ns_lshl_b64 s[50:51], s[50:51], 1")
        a(f"s_add_u32 s47, s47, 1\ns_cmp_lt_u32 s47, 8\ns_cbranch_scc1 {RD}")
        a(f"s_cmp_lg_u32 s48, 0\ns_cbranch_scc1 {TD}")
        a(f"ds_write_b32 v26, v24\ns_waitcnt lgkmcnt(0)\ns_barrier\ns_cmp_lg_u32 s3, 0\ns_cbranch_scc1 {L('sd255')}")
        a("ds_read_b32 v16, v27\ns_mov_b32 s48, 1\ns_waitcnt lgkmcnt(0)")
        a(f"v_mov_b32 v17, v16\nv_mov_b32 v18, v16\nv_mov_b32 v19, v16\ns_branch {LV}")
        a(f"{TD}:")
        a("v_or_b32 v24, 0x800, v24\ns_mov_b64 exec, 0xff")
        a(f"{L('tst')}:\nbuffer_store_dword v24, v28, s[24:27], 0 offen offset:128 {self.stfl}")
        self.stamp(7)
        a("s_waitcnt vmcnt(0)\ns_barrier")
        a(f"{L('swr')}:\nds_write_b32 v29, v24\ns_mov_b64 exec, 1\nv_mov_b32 v1, {MISC}\nv_mov_b32 v24, 0x800\nds_or_b32 v1, v24 offset:{O_SEL}\ns_mov_b64 exec, -1\ns_waitcnt lgkmcnt(0)")
        a(f"s_branch {L('sbar')}")
        a(f"{L('sd255')}:\ns_barrier")
        a(f"{L('sdone')}:")
        a(f"v_mov_b32 v1, {MISC}\ns_mov_b32 s59, 2\ns_cmp_ge_u32 s3, 4\ns_cbranch_scc1 {L('p2')}")
        if not self.bigt:
            a(f"s_cmp_eq_u32 s2, {TOPWG}\ns_mov_b32 s36, {self.c1+31}\ns_cselect_b32 s36, {self.c1+45}, s36\ns_add_u32 s36, s3, s36")
            a(f"{L('st1')}:")
            wchunk(16, 17)
            a(f"s_add_u32 s36, s36, 3\ns_cmp_lt_u32 s36, 90\ns_cbranch_scc1 {L('st1')}")
        a(f"{L('st2')}:")
        srd(a, 8, 84, 0x200000)
        self.wo_touch_addr(16, 18)
        a(f"s_add_u32 s36, s3, {23 if self.wok < 50 else -1}\ns_and_b32 s38, s28, 3")
        a(f"{L('stl')}:\ns_lshl_b32 s37, s36, 2\ns_add_u32 s37, s37, s38\ns_lshl_b32 s37, s37, 14\nbuffer_load_dword v17, v16, s[8:11], s37 offen")
        a(f"s_add_u32 s36, s36, 3\ns_cmp_lt_u32 s36, 32\ns_cbranch_scc1 {L('stl')}")
        if not self.cbs:
            a("s_and_b32 s37, s28, 4\ns_lshl_b32 s37, s37, 8\nv_lshl_add_u32 v16, v0, 11, s37\ns_sub_u32 s36, s3, 1")
            a(f"{L('stm')}:\ns_lshl_b32 s37, s36, 17\nbuffer_load_dword v17, v16, s[8:11], s37 offen offset:384")
            a(f"s_add_u32 s36, s36, 3\ns_cmp_lt_u32 s36, 16\ns_cbranch_scc1 {L('stm')}")
        a(f"{L('sbar')}:\nv_mov_b32 v1, {MISC}\ns_barrier\ns_waitcnt vmcnt(0)")
        if self.agg:
            a(f"s_cmp_lg_u32 s2, 255\ns_cbranch_scc1 {L('help2')}\ns_cmp_lg_u32 s3, 1\ns_cbranch_scc1 {L('help2')}")
            self.spin(O_WO, 16, 49, ("s_cmp_ge_u32", "4"), sleep=4)
            a(f"v_min_u32 v7, 55, v0\nv_lshlrev_b32 v7, 7, v7\nv_add_u32 v7, {PFLAG_OFF:#x}, v7")
            a(f"s_mov_b32 s49, 0\n{L('ap')}:\n{self.pl(8, 7, 's[20:23]')}\ns_waitcnt vmcnt(0)\nv_cmp_eq_u32 vcc, 0, v8\ns_add_u32 s49, s49, 1\ns_cmp_eq_u64 vcc, 0\ns_cbranch_scc1 {L('aq')}")
            a(f"s_cmp_lt_u32 s49, {POLL_MAX:#x}\ns_cbranch_scc0 {L('aq')}\ns_mov_b64 exec, vcc\ns_sleep 8\ns_branch {L('ap')}\n{L('aq')}:")
            a("s_mov_b64 exec, 1\nv_mov_b32 v7, 64\nv_mov_b32 v8, 1\nbuffer_store_dword v8, v7, s[24:27], 0 offen sc1\ns_mov_b64 exec, -1")
        a(f"s_branch {L('help2')}")
        a.hist = []

HDR = open("parallel_sum__sliding_local_dilated__moe_arch_mod__prompt.s.ref").read().split("; Override launch")[0]
KNAME = "parallel_sum__sliding_local_dilated__moe_arch_mod__prompt_kernel"
def build(path, **kw):
    a = Asm()
    a.raw(HDR.rstrip())
    a.raw(f"; @launch grid=(256,1,1) block=(512,1,1) lds={F_LDS}")
    a.raw('.amdgcn_target "amdgcn-amd-amdhsa--gfx950"\n.text')
    g = Gen(a, KNAME, **kw)
    g.name = "F"; g.END = "F_end"
    kernel_header(a, KNAME)
    _kh = globals()["kernel_header"]
    globals()["kernel_header"] = lambda a, n: None
    g.gen()
    globals()["kernel_header"] = _kh
    a.raw('.section .rodata,"a"')
    a.raw(kernel_desc(KNAME))
    open(path, "w").write(a.text())

if __name__ == "__main__":
    build("g_st.s", stamps=True)
    build("g.s")
```

```python
from common import *
DPP = "row_mask:0xf bank_mask:0xf"

def bf16r(a, d, s, smask=39):
    a(f"v_cvt_pk_bf16_f32 v{d}, v{s}, v{s}\nv_and_b32 v{d}, s{smask}, v{d}")

def reduce4(a, R):
    a(f"v_permlane32_swap_b32 v{R[0]}, v{R[1]}\nv_permlane32_swap_b32 v{R[2]}, v{R[3]}")
    a(f"v_add_f32 v{R[0]}, v{R[0]}, v{R[1]}\nv_add_f32 v{R[2]}, v{R[2]}, v{R[3]}")
    a(f"v_permlane16_swap_b32 v{R[0]}, v{R[2]}")
    a(f"v_add_f32 v{R[0]}, v{R[0]}, v{R[2]}")
    for pat in ("quad_perm:[1,0,3,2]", "quad_perm:[2,3,0,1]", "row_half_mirror", "row_mirror"):
        a(f"v_add_f32_dpp v{R[0]}, v{R[0]}, v{R[0]} {pat} {DPP}")
LANE_OF_ROW = [0, 32, 16, 48]

X0, WR, F0, S0 = 24, 56, 64, 128

def stats_loads(a, vm, sx, swr, s_row, fl=''):
    a(f"v_lshlrev_b32 v16, 4, v0\ns_lshl_b32 s54, s{s_row}, 11\ns_add_u32 s55, s54, 0x1000")
    for hh in range(2):
        for r in range(4):
            a(f"buffer_load_dwordx4 {vr(X0+8*r+4*hh,4)}, v16, {sr(sx,4)}, s{54+(r>>1)} offen offset:{(r&1)*2048+hh*1024} {fl}"); vm.add(("row", r))
    for hh in range(2):
        a(f"buffer_load_dwordx4 {vr(WR+4*hh,4)}, v16, {sr(swr,4)}, 0 offen offset:{hh*1024}"); vm.add("wr")

def stats_compute(a, vm, s_row, after_rows=None, X0=X0, tag="row", rowcode=None):
    X = lambda r: X0 + 8 * r
    F = lambda r: F0 + 16 * r
    S = lambda r: S0 + 4 * r
    def unpack(r):
        for j in range(8):
            a(f"v_lshlrev_b32 v{F(r)+2*j}, 16, v{X(r)+j}\nv_and_b32 v{F(r)+2*j+1}, s39, v{X(r)+j}")
    for r in range(4):
        vm.wait((tag, r))
        if r == 3 and after_rows:
            vm.wait("wr"); after_rows()
        unpack(r)
        a(f"v_pk_add_f32 {vr(S(r),2)}, {vr(F(r),2)}, {vr(F(r)+2,2)}\nv_pk_add_f32 {vr(S(r)+2,2)}, {vr(F(r)+4,2)}, {vr(F(r)+6,2)}")
        for j in range(4, 8):
            a(f"v_pk_add_f32 {vr(S(r)+2*(j&1),2)}, {vr(S(r)+2*(j&1),2)}, {vr(F(r)+2*j,2)}")
    for r in range(4): a(f"v_pk_add_f32 {vr(S(r),2)}, {vr(S(r),2)}, {vr(S(r)+2,2)}")
    for r in range(4): a(f"v_add_f32 v{16+r}, v{S(r)}, v{S(r)+1}")
    reduce4(a, [16, 17, 18, 19])
    a("v_mul_f32 v16, s60, v16")
    bf16r(a, 20, 16)
    a("v_sub_f32 v23, v16, v20")
    for r in range(4): a(f"v_readlane_b32 s{52+2*r}, v20, {LANE_OF_ROW[r]}\nv_readlane_b32 s{53+2*r}, v20, {LANE_OF_ROW[r]}")
    for r in range(4):
        for j in range(8):
            a(f"v_pk_add_f32 {vr(F(r)+2*j,2)}, {vr(F(r)+2*j,2)}, s[{52+2*r}:{53+2*r}] neg_lo:[0,1] neg_hi:[0,1]")
        for j in range(8):
            d = vr(S(r) + 2 * (j & 1), 2)
            if j < 2: a(f"v_pk_mul_f32 {d}, {vr(F(r)+2*j,2)}, {vr(F(r)+2*j,2)}")
            else: a(f"v_pk_fma_f32 {d}, {vr(F(r)+2*j,2)}, {vr(F(r)+2*j,2)}, {d}")
    for r in range(4): a(f"v_pk_add_f32 {vr(S(r),2)}, {vr(S(r),2)}, {vr(S(r)+2,2)}")
    for r in range(4): a(f"v_add_f32 v{16+r}, v{S(r)}, v{S(r)+1}")
    fill = []
    for r in range(4):
        for j in range(8): fill.append(f"v_cvt_pk_bf16_f32 v{X(r)+j}, v{F(r)+2*j}, v{F(r)+2*j+1}")
        for j in range(8):
            fill.append(f"v_lshlrev_b32 v{F(r)+2*j}, 16, v{X(r)+j}"); fill.append(f"v_and_b32 v{F(r)+2*j+1}, s39, v{X(r)+j}")
    b = Asm()
    reduce4(b, [16, 17, 18, 19])
    b("v_mul_f32 v23, v23, v23\nv_fma_f32 v16, v16, s60, -v23\nv_max_f32 v16, 0, v16")
    bf16r(b, 16, 16); b("v_add_f32 v16, 0x3727c5ac, v16"); bf16r(b, 16, 16); b("v_sqrt_f32 v16, v16"); bf16r(b, 16, 16); b("v_rcp_f32 v21, v16")
    for r in range(4): b(f"v_readlane_b32 s{52+2*r}, v21, {LANE_OF_ROW[r]}\nv_readlane_b32 s{53+2*r}, v21, {LANE_OF_ROW[r]}")
    for ln in b.lines:
        if "s_nop" in ln: continue
        a(ln)
        for _ in range(2):
            if fill: a(fill.pop(0))
    for f in fill: a(f)
    vm.wait("wr")
    for r in range(4):
        for j in range(8):
            a(f"v_pk_mul_f32 {vr(F(r)+2*j,2)}, {vr(F(r)+2*j,2)}, s[{52+2*r}:{53+2*r}]")
        for j in range(8): a(f"v_cvt_pk_bf16_f32 v{X(r)+j}, v{F(r)+2*j}, v{F(r)+2*j+1}")
    for j in range(8):
        for r in range(4):
            d = S(r) + (j & 1)
            a(f"v_dot2_f32_bf16 v{d}, v{X(r)+j}, v{WR+j}, {'0' if j < 2 else 'v%d' % d}")
    a(f"v_bfe_u32 v23, v0, 4, 1\nv_lshrrev_b32 v22, 5, v0\nv_lshl_add_u32 v23, v23, 1, v22")
    a(rowcode if rowcode else f"v_add_u32 v23, s{s_row}, v23")
    for r in range(4): a(f"v_add_f32 v{16+r}, v{S(r)}, v{S(r)+1}")
    reduce4(a, [16, 17, 18, 19])
    bf16r(a, 16, 16)
    a("v_ashrrev_i32 v17, 31, v16\nv_or_b32 v17, 0x80000000, v17\nv_xor_b32 v16, v16, v17\nv_and_b32 v16, s39, v16")
    a("v_sub_u32 v17, 0x7ff, v23\nv_or_b32 v22, v16, v17")

def stats_fast(a, vm, s_row, after_rows=None):
    X = lambda r: X0 + 8 * r
    S = lambda q, r: F0 + 4 * q + r
    a("s_mov_b32 s52, 0x3f803f80")
    for r in range(4):
        vm.wait(("row", r))
        if r == 3 and after_rows:
            vm.wait("wr"); after_rows()
        for j in range(8):
            for q, o in enumerate(("s52", f"v{X(r)+j}")):
                a(f"v_dot2_f32_bf16 v{S(q,r)}, v{X(r)+j}, {o}, {'v%d' % S(q,r) if j else '0'}")
    vm.wait("wr")
    for j in range(8):
        for r in range(4): a(f"v_dot2_f32_bf16 v{S(2,r)}, v{X(r)+j}, v{WR+j}, {'v%d' % S(2,r) if j else '0'}")
        a(f"v_dot2_f32_bf16 v{S(3,0)}, v{WR+j}, s52, {'v%d' % S(3,0) if j else '0'}")
    a(f"v_bfe_u32 v23, v0, 4, 1\nv_lshrrev_b32 v22, 5, v0\nv_lshl_add_u32 v23, v23, 1, v22\nv_add_u32 v23, s{s_row}, v23")
    for r in range(1, 4): a(f"v_mov_b32 v{S(3,r)}, v{S(3,0)}")
    L = []
    for q in range(4):
        b = Asm(); reduce4(b, [S(q, r) for r in range(4)]); L.append([x for x in b.lines if "s_nop" not in x])
    for k in range(len(L[0])):
        for q in range(4): a(L[q][k])
    a(f"v_mul_f32 v16, s60, v{S(0,0)}")
    bf16r(a, 20, 16)
    a(f"v_mul_f32 v16, v16, v16\nv_fma_f32 v16, v{S(1,0)}, s60, -v16\nv_max_f32 v16, 0, v16\nv_fma_f32 v17, -v20, v{S(3,0)}, v{S(2,0)}")
    bf16r(a, 16, 16); a("v_add_f32 v16, 0x3727c5ac, v16"); bf16r(a, 16, 16); a("v_sqrt_f32 v16, v16"); bf16r(a, 16, 16); a("v_rcp_f32 v21, v16")
    a("v_mul_f32 v16, v17, v21")
    bf16r(a, 16, 16)
    a("v_ashrrev_i32 v17, 31, v16\nv_or_b32 v17, 0x80000000, v17\nv_xor_b32 v16, v16, v17\nv_and_b32 v16, s39, v16")
    a("v_sub_u32 v17, 0x7ff, v23\nv_or_b32 v22, v16, v17")
```

```python
from fused import *
B = dict(p2i=3, fst=1, i2e=0, upf=29, ldg=3, ldp=1, ch=1, chb=1)
build("h_a.s", **B)
build("h_b.s", **{**B, "i2e": 4})
build("h_c.s", **B, fai=1)
build("h_d.s", **B, hpoll=9)
build("h_e.s", **{**B, "ldg": 4, "ldp": 2})
build("h_f.s", **B, osleep=4)
```

```python
from common import *
from stats import stats_loads, stats_compute, stats_fast

SLOT = 49152
MISC = 3 * SLOT
O_EPI = 56
O_FULL, O_ISS, O_ARR, O_WO, O_GO, O_HELP, O_STATRDY, O_XF = 0, 16, 20, 24, 28, 32, 36, 40
L_ONES = MISC + 64
O_SEL = 256
L_M = MISC + 1536
L_MRI = MISC + 3072
L_CS = MISC + 4608
L_XCH = MISC + 5632
L_UPD = MISC + 9728
L_DUMMY = L_UPD + 9 * 256
F_LDS = L_DUMMY + 2112
M_SH = 131072
M_CAND = M_SH
M_H = M_SH + 256
OFLAG_OFF = 0x10000
PFLAG_OFF = OFLAG_OFF + 192 * 128
SFLAG_OFF = OFLAG_OFF + 256 * 128
NEG_BIG = 0xf149f2ca
SM_C = 0x3e8293ee
DPP = "row_mask:0xf bank_mask:0xf"
POLL_MAX = 0x8000
QA = [[4, 3, 7, 1], [2, 5, 0, 4], [5, 0, 2, 6], [1, 6, 3, 5], [0, 2, 4, 7], [3, 7, 5, 2]]
QB = [[6, 1, 4, 3], [1, 3, 5, 7], [7, 4, 2, 1], [3, 5, 6, 0], [0, 7, 3, 5], [4, 2, 0, 6]]
TOPWG = 252
M_GM = M_SH + 512
M_C2 = M_SH + 1024

class Gen:
    def __init__(self, a, name, stamps=False, G=8, ra=2, rb_=3, order=None, hpoll=10, nomoe=False, codepf=False, c3pf=False, sparepf=True, dry=False, osleep=8, pace=None, qtab=True, w3pf=True, epiw=False, ofl='sc1', wogate=0, mallpf=True, xsh=0, ldg=4, agg=True, ldp=2, zl=False, x5=True, tlb=0, swp=0, pmask=True, psl=24, fw=0, zf=True, zg=False, pm=0, stfl='sc1', sp2=False, sp3=True, notouch=0, n0=8, snt=False, lal=None, mp=3, fb2=False, msl=8, hg2=False, gk=1, tu=7, x4=True, cbs=True, tb=4, i2e=4, fl128=False, wfirst=0, hgate=1, sp1=True, npoll=1, wsh=True, p2loop=False, p2v=2, spread=True, la=2, bigt=0, d0=4, wok=10, ew=True, t3=True, tk=(2, 4, 6), wo14=True, bar=(1, 1), wo2=False, sgate=False, mdelay=0, htouch=None, fine=True, probe=None, early=False, prew=0, prewat=3, r2pf=None, rounds=None, moent='nt', codetop=False, pollfl='sc1', xfl='', wfl='', rfl='', p2i=0, p2p=0, fst=0, fai=0, own=0, cop=None, upf=0, ch=0, chb=0, snk=0, p2c=0, nf=0, dl=0):
        self.dl = dl
        self.nf = nf
        self.snk, self.p2c = snk, p2c
        self.ch, self.chb = ch, chb
        self.cop, self.upf = cop, upf
        self.own = own
        self.fst, self.fai = fst, fai
        self.p2i, self.p2p = p2i, p2p
        self.a, self.name, self.stamps = a, name, stamps
        self.G, self.ra, self.rb_, self.order, self.hpoll, self.nomoe = G, ra, rb_, order, hpoll, nomoe
        self.END = name + "_end"
        self.early, self.prew, self.prewat = early, prew, prewat
        self.sp2, self.sp3, self.notouch = sp2, sp3, notouch
        if notouch & 1: ew, tb, wok = False, 99, 99
        if notouch & 2: gk, tu, d0 = 99, 98, 99
        self.pm, self.stfl, self.fw, self.zf, self.zg = pm, stfl, fw, zf, zg
        self.ldg, self.agg, self.ldp = ldg, agg, ldp
        self.zl, self.x5 = zl, x5
        self.swp, self.tlb = swp, tlb
        self.pmask, self.psl = pmask, psl
        self.fb2, self.n0 = fb2, n0
        self.c1 = 4 * n0
        self.lal, self.snt = lal, snt
        self.mp, self.msl = mp, msl
        self.hg2, self.gk = hg2, gk
        self.tb, self.tu, self.cbs, self.x4 = tb, tu, cbs, x4
        self.fl128, self.i2e = fl128, i2e
        self.sp1, self.wfirst, self.hgate = sp1, wfirst, hgate
        self.la, self.npoll, self.wsh = la, npoll, wsh
        self.bigt, self.p2loop, self.p2v, self.spread = bigt, p2loop, p2v, spread
        self.t3, self.d0, self.wok, self.ew = t3, d0, wok, ew
        self.bar, self.tk, self.wo14 = bar, tk, wo14
        self.wo2, self.sgate = wo2, sgate
        self.htouch, self.mdelay = htouch, mdelay
        self.fine, self.mallpf, self.xsh = fine, mallpf, xsh
        self.probe, self.ofl, self.wogate = probe, ofl, wogate
        self.rounds, self.r2pf = rounds, r2pf
        self.qtab, self.w3pf, self.moent, self.codetop = qtab, w3pf, moent, codetop
        self.epiw, self.pollfl, self.xfl, self.wfl, self.rfl = epiw, pollfl, xfl, wfl, rfl
        self.dry, self.osleep, self.pace = dry, osleep, pace
        self.codepf, self.c3pf, self.sparepf = codepf, c3pf, sparepf
    def L(self, s): return f"{self.name}_{s}"
    def stamp(self, k):
        if self.stamps:
            self.a(f"s_memrealtime s[98:99]\ns_waitcnt lgkmcnt(0)\ns_mov_b32 s{88+k}, s98")
    def finish(self):
        a = self.a
        if self.stamps:
            a(f"s_branch {self.L('fin')}")
        else:
            a("s_endpgm")
        a.hist = []
    def spin(self, off, vtmp, stmp, cond, sleep=0, vaddr=1):
        a = self.a
        L = a.newlabel(self.name + "_sp")
        if sleep: a(f"s_branch {L}_e\n{L}:\ns_sleep {sleep}\n{L}_e:")
        else: a(f"{L}:")
        a(f"ds_read_b32 v{vtmp}, v{vaddr} offset:{off}\ns_waitcnt lgkmcnt(0)")
        a(f"v_readfirstlane_b32 s{stmp}, v{vtmp}\n{cond[0]} s{stmp}, {cond[1]}\ns_cbranch_scc0 {L}")
    def gpoll(self, load, vdst, cmp, scnt, sleep, preloaded=False, diag=False):
        a = self.a
        PL, PC, PD = a.newlabel(self.name + "_pl"), a.newlabel(self.name + "_pc"), a.newlabel(self.name + "_pd")
        a(f"s_mov_b32 s{scnt}, 0")
        if preloaded: a(f"s_branch {PC}")
        a(f"{PL}:\n{load}\ns_waitcnt vmcnt(0)")
        a(f"{PC}:\n{cmp}\ns_cmp_eq_u64 vcc, -1\ns_cbranch_scc1 {PD}")
        if diag and self.stamps:
            a(f"s_not_b32 s90, vcc_lo\ns_mov_b32 s91, s{scnt}\ns_mov_b32 s93, s92")
            self.stamp(4)
        a(f"s_add_u32 s{scnt}, s{scnt}, 1\ns_cmp_lt_u32 s{scnt}, {POLL_MAX:#x}\ns_cbranch_scc0 {PD}\ns_sleep {sleep}\ns_branch {PL}")
        a(f"{PD}:")
    def pl(self, vd, va, srd_, off=0):
        o = f" offset:{off}" if off else ""
        if self.pm == 1: return f"v_mov_b32 v{vd}, 0\nbuffer_atomic_or v{vd}, v{va}, {srd_}, 0 offen{o} sc0 sc1"
        return f"buffer_load_dword v{vd}, v{va}, {srd_}, 0 offen{o} {self.pollfl}"
    def p2decode(self):
        a = self.a
        a("s_and_b32 s30, s28, 1\ns_lshl_b32 s30, s30, 3\ns_and_b32 s31, s28, 2\ns_lshl_b32 s31, s31, 1\ns_add_u32 s30, s30, s31\ns_lshr_b32 s31, s29, 3\ns_add_u32 s30, s30, s31")
        a("s_and_b32 s34, s29, 7")
        if self.cbs:
            a("s_add_u32 s32, s28, 3\ns_and_b32 s32, s32, 7\ns_cmp_eq_u32 s29, 27\ns_cselect_b32 s34, s32, s34\ns_add_u32 s32, s32, 24\ns_cmp_eq_u32 s29, s32\ns_cselect_b32 s34, 3, s34")
        a("s_and_b32 s32, s28, 4\ns_lshl_b32 s32, s32, 1\ns_add_u32 s32, s32, s34")
    def opoll(self, full, done):
        a = self.a
        a("s_lshl_b32 s49, s30, 3\ns_mul_i32 s50, s49, 187\ns_lshr_b32 s50, s50, 11\ns_add_u32 s49, s49, 7\ns_mul_i32 s49, s49, 187\ns_lshr_b32 s49, s49, 11")
        a("v_mov_b32 v16, s50\nv_mov_b32 v17, s49\nv_cmp_gt_u32 vcc, 16, v0\nv_cndmask_b32 v16, v17, v16, vcc\nv_and_b32 v17, 15, v0\nv_lshlrev_b32 v17, 7, v17")
        a(f"v_lshl_add_u32 v8, v16, 11, v17\nv_add_u32 v8, {OFLAG_OFF:#x}, v8\ns_mov_b32 s49, 0\ns_mov_b32 exec_hi, 0\ns_mov_b32 s52, -1\ns_mov_b32 s53, 0")
        OP, OS, NX = a.newlabel("F_opl"), a.newlabel("F_ops"), a.newlabel("F_opn")
        a(f"{OP}:\n{self.pl(16, 8, 's[20:23]')}\ns_add_u32 s49, s49, 1\ns_waitcnt vmcnt(0)\nv_cmp_ne_u32 vcc, 0, v16")
        a("s_or_b32 s53, s53, vcc_lo")
        a(f"s_cmp_lt_u32 s49, {POLL_MAX:#x}\ns_cselect_b32 s50, s53, s52\ns_mov_b32 exec_lo, 1\nv_mov_b32 v17, s50\nds_or_b32 v1, v17 offset:{O_GO}")
        a(f"s_cmp_eq_u32 s50, s52\ns_cbranch_scc1 {done}")
        if not full:
            a(f"s_cmp_eq_u32 s50, 0\ns_cbranch_scc1 {NX}\nds_read_b32 v17, v1 offset:{O_EPI}\ns_waitcnt lgkmcnt(0)\nv_readfirstlane_b32 s51, v17\ns_cmp_ge_u32 s51, 4\ns_cbranch_scc1 {done}\n{NX}:")
        a(f"s_not_b32 exec_lo, s53\ns_cmp_eq_u32 s53, 0\ns_cbranch_scc0 {OS}\ns_sleep 12\n{OS}:\ns_sleep {self.osleep}\ns_branch {OP}")
    def parrive(self):
        a = self.a
        N = a.newlabel("F_npa")
        a(f"s_cmp_eq_u32 s56, 0\ns_cbranch_scc1 {N}\nv_mov_b32 v16, 1\nv_mov_b32 v17, s56\ns_mov_b64 exec, 1\nds_add_rtn_u32 v18, v1, v16 offset:{O_ARR}\ns_waitcnt lgkmcnt(0)")
        a(f"v_readfirstlane_b32 s49, v18\ns_cmp_lg_u32 s49, 7\ns_cbranch_scc1 {N}\nbuffer_store_dword v16, v17, s[20:23], 0 offen sc1\n{N}:\ns_mov_b64 exec, -1")
    def wo_touch_addr(self, v, t):
        a = self.a
        a(f"v_lshrrev_b32 v{v}, 3, v0\nv_lshlrev_b32 v{v}, 11, v{v}\nv_and_b32 v{t}, 7, v0\nv_lshl_add_u32 v{v}, v{t}, 7, v{v}")
        a(f"s_and_b32 s36, s28, 4\ns_lshl_b32 s36, s36, 8\nv_add_u32 v{v}, s36, v{v}")

    def gen(self):
        a, L = self.a, self.L
        kernel_header(a, self.name)
        a(f"s_cmp_ge_u32 s2, 256\ns_cbranch_scc1 {self.END}")
        a("s_load_dwordx4 s[4:7], s[0:1], 0")
        a("s_load_dwordx4 s[72:75], s[0:1], 72")
        a("s_load_dwordx2 s[84:85], s[0:1], 16")
        a("s_load_dwordx2 s[86:87], s[0:1], 64")
        if self.stamps:
            a("s_memrealtime s[88:89]")
            for k in range(2, 10): a(f"s_mov_b32 s{88+k}, 0")
        a("v_lshrrev_b32 v1, 6, v0\nv_and_b32 v0, 63, v0")
        a("v_readfirstlane_b32 s3, v1")
        a("s_and_b32 s28, s2, 7\ns_lshr_b32 s29, s2, 3\ns_mov_b32 s39, 0xffff0000")
        if self.stamps: a("s_mov_b32 s100, s3")
        if self.codetop:
            a(f"s_cmp_lg_u32 s29, 31\ns_cbranch_scc1 {L('nct')}\ns_getpc_b64 s[8:9]\n{L('pc0')}:")
            a(f"s_sub_u32 s8, s8, {L('pc0')}-{KNAME}\ns_subb_u32 s9, s9, 0\ns_mov_b32 s10, {L('end')}-{KNAME}\ns_mov_b32 s11, 0x20000")
            a(f"v_lshlrev_b32 v5, 6, v0\ns_lshl_b32 s36, s3, 12\nbuffer_load_dword v255, v5, s[8:11], s36 offen\n{L('nct')}:")
        a(f"s_cmp_ge_u32 s29, 24\ns_cbranch_scc1 {L('moe')}")
        a("s_mul_i32 s31, s29, 43\ns_lshr_b32 s31, s31, 8")
        a("s_mul_i32 s30, s31, 6\ns_sub_u32 s30, s29, s30")
        a("s_and_b32 s32, s28, 1\ns_mul_i32 s32, s32, 6\ns_add_u32 s30, s30, s32")
        a("s_lshr_b32 s32, s28, 1\ns_lshl_b32 s32, s32, 2\ns_add_u32 s31, s31, s32")
        a("s_mul_i32 s33, s30, 176\ns_sub_u32 s33, s33, 16")
        a(f"v_mov_b32 v1, {MISC}\ns_mov_b32 s56, 0")
        a(f"s_cmp_lt_u32 s3, 4\ns_cbranch_scc1 {L('cons')}")
        self.loader()
        self.p2()
        self.cons()
        self.help2()
        self.moe()
        if self.stamps:
            a(f"{L('fin')}:")
            a("s_mov_b64 exec, -1\ns_waitcnt vmcnt(0)")
            self.stamp(1)
            if self.probe:
                (w0, w1), (v0, v1), k, mul = self.probe
                a(f"s_cmp_lt_u32 s2, {w0}\ns_cbranch_scc1 {self.END}\ns_cmp_gt_u32 s2, {w1}\ns_cbranch_scc1 {self.END}\ns_cmp_lt_u32 s100, {v0}\ns_cbranch_scc1 {self.END}\ns_cmp_gt_u32 s100, {v1}\ns_cbranch_scc1 {self.END}")
                a(f"s_sub_u32 s49, s{88+k}, s88\ns_mul_i32 s49, s49, {mul}\ns_add_u32 s49, s49, 10000\ns_sleep 127\ns_sleep 127\ns_sleep 127\ns_sleep 127")
                a(f"F_prb:\ns_sleep 8\ns_memrealtime s[98:99]\ns_waitcnt lgkmcnt(0)\ns_sub_u32 s50, s98, s88\ns_cmp_lt_u32 s50, s49\ns_cbranch_scc1 F_prb\ns_endpgm")
            srd(a, 20, 74, WS_SIZE)
            a(f"s_lshl_b32 s49, s2, 9\ns_lshl_b32 s50, s100, 6\ns_add_u32 s49, s49, s50\ns_add_u32 s49, s49, {STAMP_OFF:#x}\nv_mov_b32 v2, s49")
            for k in range(10): a(f"v_mov_b32 v{4+k}, s{88+k}")
            a("buffer_store_dwordx4 v[4:7], v2, s[20:23], 0 offen\nbuffer_store_dwordx4 v[8:11], v2, s[20:23], 0 offen offset:16\nbuffer_store_dwordx2 v[12:13], v2, s[20:23], 0 offen offset:32")
        a(f"{self.END}:\ns_endpgm")

    def statdma(self, sel=True):
        a = self.a
        a(f"s_mov_b32 s46, {MR_OFF:#x}\ns_mov_b32 s47, {MR_OFF+4:#x}")
        for i in range(3):
            a(f"s_mov_b32 m0, {L_M+256*i}\nbuffer_load_dword v{24+i}, s[20:23], s46 offen sc1 lds")
            a(f"s_mov_b32 m0, {L_M+768+256*i}\nbuffer_load_dword v{24+i}, s[20:23], s47 offen sc1 lds")
        for i in range(6):
            a(f"s_mov_b32 m0, {L_MRI+256*i}\nbuffer_load_dword v{36+i}, s[20:23], s46 offen sc1 lds")
        if sel: a(f"s_mov_b32 m0, {MISC+O_SEL}\ns_mov_b32 s46, 128\nbuffer_load_dword v27, s[24:27], s46 offen sc1 lds")

    def loader(self):
        a, L = self.a, self.L
        a("s_sub_u32 s3, s3, 4\ns_mul_i32 s45, s3, 12288")
        a(f"s_cmp_ge_u32 s3, 2\ns_cbranch_scc1 {L('lw')}")
        a("v_lshrrev_b32 v16, 3, v0\nv_lshrrev_b32 v17, 4, v0\nv_and_b32 v18, 7, v0\nv_xor_b32 v17, v17, v18\nv_lshlrev_b32 v17, 4, v17")
        a("v_xor_b32 v18, 64, v17\ns_mul_i32 s36, s3, 96\ns_add_u32 s36, s36, s33\nv_add_u32 v16, s36, v16")
        for p in range(12):
            if p < 2: a(f"v_add_u32 v19, {8*p}, v16\nv_max_i32 v19, 0, v19\nv_lshl_add_u32 v{2+p}, v19, 11, v{17+(p&1)}\nv_add_u32 v{2+p}, {4096-1024*(p&3)}, v{2+p}")
            elif p < 4: a(f"v_lshl_add_u32 v{2+p}, v16, 11, v{17+(p&1)}\nv_add_u32 v{2+p}, {p*16384+4096-1024*(p&3)}, v{2+p}")
            else: a(f"v_add_u32 v{2+p}, {(p-2-(p&1))*16384-1024*((p&3)-2-(p&1))}, v{4+(p&1)}")
        a("s_mov_b32 s42, 128\ns_waitcnt lgkmcnt(0)")
        a(f"s_sub_u32 s12, s4, 0x1000\ns_subb_u32 s13, s5, 0\ns_mov_b32 s14, 0x401000\ns_mov_b32 s15, 0x20000\ns_branch {L('lgo')}")
        a(f"{L('lw')}:\ns_mov_b32 s36, 6144")
        w_dma_laneoff(a, 2, 0, 16, 17, 36, True)
        a(f"s_lshl_b32 s36, s31, 7\ns_cmp_eq_u32 s3, 3\ns_cselect_b32 s37, {2048+32*6144}, 0\ns_add_u32 s36, s36, s37\nv_add_u32 v2, s36, v2")
        a(f"s_cmp_eq_u32 s3, 3\ns_mov_b32 s36, {32*6144}\ns_cselect_b32 s36, {2048-32*6144}, s36")
        for q in range(1, 4): a(f"v_add_u32 v{2+q}, {(0,4,16,20)[q]*6144 - 1024*q}, v2")
        for q in range(4): a(f"v_add_u32 v{6+q}, s36, v{2+q}\nv_add_u32 v{10+q}, 2048, v{2+q}")
        a("s_mov_b32 s42, 393216\ns_waitcnt lgkmcnt(0)")
        srd(a, 12, 6, 0x600000)
        a(f"{L('lgo')}:\ns_mov_b32 s43, 0\ns_mov_b32 s40, s45")
        def issue():
            for g in range(3):
                a(f"s_add_u32 m0, s40, {g*4096}")
                for q in range(4): a(f"buffer_load_dwordx4 v{2+4*g+q}, s[12:15], s43 offen offset:{1024*q} lds")
            a(f"s_add_u32 s43, s43, s42\ns_add_u32 s40, s40, {SLOT}\ns_cmp_ge_u32 s40, {3*SLOT}\ns_cselect_b32 s40, s45, s40")
        issue(); issue()
        D0, P = self.d0, self.hpoll
        a("s_load_dwordx4 s[64:67], s[0:1], 40\ns_mov_b32 s61, 0\ns_mov_b32 s59, 0\ns_mov_b32 s11, 0x20000")
        a(f"s_cmp_eq_u32 s3, 1\ns_cbranch_scc1 {L('r1')}\ns_cmp_eq_u32 s3, 2\ns_cbranch_scc1 {L('r2')}\ns_cmp_eq_u32 s3, 3\ns_cbranch_scc1 {L('r3')}")
        a(f"s_lshl_b32 s36, s29, 14\ns_lshr_b32 s37, s28, 1\ns_lshl_b32 s37, s37, 9\ns_add_u32 s36, s36, s37\ns_add_u32 s36, s36, {D0*393216+384}\nv_lshl_add_u32 v21, v0, 11, s36")
        a(f"s_bitcmp1_b32 s28, 1\ns_cselect_b32 s58, 0, {7*393216 if self.bigt else 0x600000}\ns_mov_b64 s[62:63], 0xff\ns_mov_b32 s60, 393216\ns_mov_b32 s8, s6\ns_mov_b32 s9, s7\ns_branch {L('rd0')}")
        a(f"{L('r1')}:")
        self.wo_touch_addr(21, 17)
        a(f"s_lshl_b32 s36, s29, 2\ns_and_b32 s37, s28, 3\ns_add_u32 s36, s36, s37\ns_lshl_b32 s36, s36, 14\nv_add_u32 v21, s36, v21")
        a(f"s_mov_b64 s[62:63], -1\ns_mov_b32 s60, 0x200000\ns_mov_b32 s58, 0x200000\ns_mov_b32 s59, {self.wok}\ns_mov_b32 s8, s84\ns_mov_b32 s9, s85\ns_branch {L('rd0')}")
        a(f"{L('r2')}:\ns_add_u32 s37, s28, 3\ns_and_b32 s37, s37, 7\n" + (f"s_min_u32 s37, s37, 6\ns_mov_b32 s58, {1024*7168}" if self.x4 else f"s_cmp_eq_u32 s37, 7\ns_cselect_b32 s58, 0, {1024*7168}") + f"\ns_mul_i32 s38, s28, 7\ns_add_u32 s37, s37, s38\ns_lshl_b32 s37, s37, 7")
        if self.tu:
            a(f"s_mul_i32 s38, s29, {44*7168}\ns_add_u32 s37, s37, s38\ns_mov_b32 s38, 7168\nv_mul_lo_u32 v21, v0, s38\nv_add_u32 v21, s37, v21\ns_mov_b32 s62, -1\ns_mov_b32 s63, 0xfff\ns_mov_b32 s60, {1024*7168}\ns_mov_b32 s59, {self.gk}")
        else:
            a(f"s_mul_i32 s38, s29, {22*7168}\ns_add_u32 s37, s37, s38\ns_mov_b32 s38, 7168\nv_mul_lo_u32 v21, v0, s38\nv_add_u32 v21, s37, v21\ns_mov_b32 s62, 0x3fffff\ns_mov_b32 s63, 0\ns_mov_b32 s60, {528*7168}\ns_mov_b32 s59, 1")
        a(f"s_waitcnt lgkmcnt(0)\ns_mov_b32 s8, s64\ns_mov_b32 s9, s65\ns_branch {L('rd0')}")
        a(f"{L('r3')}:\nv_and_b32 v21, 7, v0\nv_lshlrev_b32 v21, 2, v21\nv_add_u32 v21, 128, v21\ns_mov_b64 s[62:63], -1\ns_mov_b32 s60, 0\ns_mov_b32 s58, 0x100\ns_mov_b32 s59, {P}\ns_mov_b32 s8, s72\ns_mov_b32 s9, s73")
        a(f"{L('rd0')}:\ns_mov_b32 s41, 0\ns_mov_b32 s44, 0\nv_mov_b32 v28, 0\ns_waitcnt vmcnt(12) lgkmcnt(0)\ns_barrier")
        def side():
            a("s_cmp_ge_u32 s44, s59\ns_cselect_b32 s10, s58, 0\ns_cselect_b32 s36, s60, 0\ns_mov_b64 exec, s[62:63]")
            if self.snt:
                A, B = a.newlabel("F_sn"), a.newlabel("F_sm")
                a(f"s_cmp_eq_u32 s3, 2\ns_cbranch_scc1 {A}\nbuffer_load_dword v28, v21, s[8:11], 0 offen sc1\ns_branch {B}\n{A}:\nbuffer_load_dword v28, v21, s[8:11], 0 offen nt\n{B}:")
            else: a(f"buffer_load_dword v28, v21, s[8:11], 0 offen {self.pollfl}")
            a("s_mov_b64 exec, -1\nv_add_u32 v21, s36, v21")
        issue(); side()
        srd(a, 20, 74, WS_SIZE); srd(a, 24, 72, 0x100)
        for i in range(3):
            a(f"v_add_u32 v{24+i}, s33, v0\nv_add_u32 v{24+i}, {64*i}, v{24+i}\nv_max_i32 v{24+i}, 0, v{24+i}\nv_min_i32 v{24+i}, 0x7ff, v{24+i}\nv_lshlrev_b32 v{24+i}, 3, v{24+i}")
        a("v_lshrrev_b32 v16, 1, v0\nv_add_u32 v16, s33, v16")
        for i in range(6):
            a(f"v_add_u32 v{36+i}, {32*i}, v16\nv_max_i32 v{36+i}, 0, v{36+i}\nv_min_i32 v{36+i}, 0x7ff, v{36+i}\nv_lshlrev_b32 v{36+i}, 3, v{36+i}")
        a("v_and_b32 v27, 7, v0\nv_lshlrev_b32 v27, 2, v27\ns_cmp_lg_u32 s3, 3\ns_cselect_b32 s41, 1, 0")
        if self.tb or self.tu:
            srd(a, 16, 6, 0x600000)
            a(f"s_lshl_b32 s36, s29, 1\ns_and_b32 s37, s28, 1\ns_add_u32 s36, s36, s37\ns_lshl_b32 s36, s36, 15\ns_lshr_b32 s37, s28, 1\ns_lshl_b32 s37, s37, 9\ns_add_u32 s36, s36, s37\ns_add_u32 s36, s36, {393216+2*(self.c1+8)*32768}")
            a("v_lshrrev_b32 v22, 2, v0\nv_lshlrev_b32 v22, 11, v22\nv_and_b32 v17, 3, v0\nv_lshl_add_u32 v22, v17, 7, v22\nv_add_u32 v22, s36, v22")
            a(f"s_cmp_eq_u32 s3, 1\ns_cselect_b32 s68, {self.tb or -1}, -1")
            if self.tu:
                a(f"s_cmp_lg_u32 s3, 2\ns_cbranch_scc1 {L('nup')}\ns_mov_b32 s68, {self.tu}\ns_mov_b32 s16, s66\ns_mov_b32 s17, s67\ns_mov_b32 s18, s58\n{'v_mov_b32 v22, v21' if self.gk else 'v_subrev_u32 v22, s60, v21'}\n{L('nup')}:")
        if self.tlb:
            a("s_mov_b32 s69, s30\ns_mov_b32 s70, s31")
            self.p2decode()
            a(f"s_cmp_lg_u32 s3, 0\ns_cbranch_scc1 {L('tl3')}\ns_mov_b32 s68, {self.tlb}\ns_mov_b32 s16, s74\ns_mov_b32 s17, s75\ns_mov_b32 s18, {WS_SIZE:#x}")
            a(f"s_mul_i32 s36, s69, {11*32768}\ns_lshl_b32 s37, s70, 11\ns_add_u32 s36, s36, s37\ns_add_u32 s36, s36, {O_OFF:#x}\ns_lshl_b32 s37, s30, 18\ns_add_u32 s37, s37, {O_OFF-4*65536:#x}")
            a(f"v_mul_u32_u24 v22, {3*32768+10923}, v0\nv_and_b32 v22, 0xffff8000, v22\nv_add_u32 v22, s36, v22\nv_lshl_add_u32 v17, v0, 16, s37\nv_cmp_gt_u32 vcc, 4, v0\nv_cndmask_b32 v22, v17, v22, vcc")
            a(f"{L('tl3')}:\ns_cmp_lg_u32 s3, 3\ns_cbranch_scc1 {L('tl4')}\ns_mov_b32 s68, {self.tlb}\ns_mov_b32 s16, s86\ns_mov_b32 s17, s87\ns_mov_b32 s18, 0x400000")
            a(f"s_lshl_b32 s36, s30, 18\ns_lshl_b32 s37, s32, 7\ns_add_u32 s36, s36, s37\nv_and_b32 v22, 3, v0\nv_lshl_add_u32 v22, v22, 16, s36\n{L('tl4')}:\ns_mov_b32 s30, s69\ns_mov_b32 s31, s70")
        if self.bigt:
            srd(a, 16, 6, 0x600000)
            a(f"s_mul_i32 s36, s3, 24\ns_add_u32 s36, s36, s29\ns_lshl_b32 s36, s36, 1\ns_and_b32 s37, s28, 1\ns_add_u32 s38, s36, s37\ns_xor_b32 s37, s38, 1\ns_mul_i32 s38, s38, {10*2048}\ns_mul_i32 s37, s37, {10*2048}")
            a(f"s_lshr_b32 s36, s28, 1\ns_lshl_b32 s36, s36, 9\ns_add_u32 s36, s36, {1216*2048}\ns_add_u32 s38, s38, s36\ns_add_u32 s37, s37, s36\ns_add_u32 s37, s37, {384-40*2048}")
            a("v_lshrrev_b32 v22, 2, v0\nv_lshlrev_b32 v22, 11, v22\nv_and_b32 v17, 3, v0\nv_lshl_add_u32 v22, v17, 7, v22\nv_add_u32 v22, s38, v22\nv_lshl_add_u32 v17, v0, 11, s37\nv_cmp_gt_u32 vcc, 40, v0\nv_cndmask_b32 v22, v17, v22, vcc")
            a("s_bitcmp1_b32 s28, 1\ns_mov_b32 s66, 0x3ffff\ns_cselect_b32 s66, 0xff, s66")
        a("s_waitcnt vmcnt(13)")
        LL = L("ll")
        def lst(idx):
            if self.stamps: a(f"s_memrealtime s[98:99]\ns_waitcnt lgkmcnt(0)\ns_mov_b32 m0, {idx}\nv_writelane_b32 v30, s98, m0")
        if self.stamps: a("v_mov_b32 v30, 0")
        a(f"{LL}:")
        if self.stamps: a("s_add_u32 s57, s44, 32"); lst("s57")
        a("s_barrier")
        lst("s44")
        issue()
        a(f"s_add_u32 s44, s44, 1\ns_cmp_lg_u32 s41, 0\ns_cbranch_scc1 {L('lsd')}\nv_cmp_ne_u32 vcc, 0, v28\ns_cmp_eq_u64 vcc, -1\ns_cbranch_scc0 {L('lsd')}")
        self.statdma()
        a(f"s_mov_b32 s41, 1\ns_mov_b32 s58, 0\ns_waitcnt vmcnt(26)\ns_branch {L('lnx')}")
        a(f"{L('lsd')}:")
        if self.tb or self.tu:
            a(f"s_cmp_lg_u32 s44, s68\ns_cbranch_scc1 {L('lsd2')}\ns_mov_b64 exec, s[62:63]\n" + (f"s_cmp_eq_u32 s3, 2\ns_cbranch_scc1 {L('an')}\nbuffer_load_dword v20, v22, s[16:19], 0 offen\ns_branch {L('am')}\n{L('an')}:\nbuffer_load_dword v20, v22, s[16:19], 0 offen nt\n{L('am')}:" if self.snt else "buffer_load_dword v20, v22, s[16:19], 0 offen") + f"\ns_mov_b64 exec, -1\ns_waitcnt vmcnt(14)\ns_branch {L('lnx')}\n{L('lsd2')}:")
        if self.bigt:
            a(f"s_cmp_lg_u32 s44, {self.bigt}\ns_cbranch_scc1 {L('lsd2')}\ns_mov_b32 exec_hi, s66\nbuffer_load_dword v20, v22, s[16:19], 0 offen\ns_mov_b32 exec_hi, -1\ns_waitcnt vmcnt(14)\ns_branch {L('lnx')}\n{L('lsd2')}:")
        side()
        a("s_waitcnt vmcnt(14)")
        a(f"{L('lnx')}:\ns_cmp_lt_u32 s44, 13\ns_cbranch_scc1 {LL}")
        self.p2decode()
        self.woaddr()
        lst(45)
        a("s_barrier")
        lst(13)
        self.wopart(48, 3)
        a("s_waitcnt vmcnt(12)")
        lst(46)
        a("s_barrier")
        lst(14)
        self.wopart(96, 3 if self.wsh else 2)
        lst(47)
        a("s_barrier")
        lst(15)
        if self.stamps:
            a(f"s_lshl_b32 s49, s2, 10\ns_lshl_b32 s50, s3, 8\ns_add_u32 s49, s49, s50\ns_add_u32 s49, s49, {STAMP_OFF+0x40000:#x}\nv_lshl_add_u32 v31, v0, 2, s49\nbuffer_store_dword v30, v31, s[20:23], 0 offen")
        a(f"s_cmp_lg_u32 s41, 0\ns_cbranch_scc1 {L('p2g')}")
        self.gpoll("buffer_load_dword v28, v27, s[24:27], 0 offen offset:128 sc1", 28, "v_cmp_ne_u32 vcc, 0, v28", 47, 8)
        self.statdma(False)
        a(f"v_or_b32 v28, 0x800, v28\nv_add_u32 v16, v27, v1\ns_waitcnt vmcnt(0)\nds_write_b32 v16, v28 offset:{O_SEL}")
        a(f"{L('p2g')}:\ns_mov_b32 s59, 0\ns_branch {L('p2c')}")

    def woaddr(self, v=220):
        a = self.a
        a("s_mov_b32 s36, 2048")
        w_dma_laneoff(a, v, 0, 14, 15, 36, False)
        a(f"s_lshl_b32 s36, s32, 7\nv_add_u32 v{v}, s36, v{v}")
        for q in range(1, 4): a(f"v_add_u32 v{v+q}, {q*(16384-1024)}, v{v}")
        srd(a, 12, 84, 0x200000)
    def wopart(self, p0, n4, v=220):
        a = self.a
        a(f"s_mul_i32 s49, s3, {4096*n4}\ns_lshl_b32 s38, s49, 4\ns_add_u32 s49, s49, {p0*1024}\ns_add_u32 s38, s38, {((p0-48)%128)*16384}")
        for g in range(n4):
            a(f"s_add_u32 m0, s49, {g*4096}")
            if g: a("s_add_u32 s38, s38, 0x10000")
            for q in range(4): a(f"buffer_load_dwordx4 v{v+q}, s[12:15], s38 offen offset:{q*1024} lds")

    def p2a(self, wait):
        a = self.a
        XR, MRR, vO0, vO1, vX, vMR = 200, 216, 4, 5, 6, 7
        srd(a, 8, 4, 0x400000); srd(a, 16, 86, 0x400000); srd(a, 20, 74, WS_SIZE)
        a("s_lshl_b32 s35, s30, 7\ns_lshl_b32 s36, s3, 5\ns_add_u32 s35, s35, s36")
        a("v_and_b32 v14, 15, v0\nv_add_u32 v14, s35, v14")
        a(f"v_lshlrev_b32 v{vMR}, 3, v14\nv_add_u32 v{vMR}, {MR_OFF:#x}, v{vMR}")
        a(f"v_lshlrev_b32 v{vX}, 11, v14")
        a("v_bfe_u32 v15, v0, 4, 1"); a(f"v_lshl_add_u32 v{vX}, v15, 5, v{vX}")
        a("v_lshrrev_b32 v15, 5, v0"); a(f"v_lshl_add_u32 v{vX}, v15, 4, v{vX}")
        a(f"s_lshl_b32 s36, s32, 7\nv_add_u32 v{vX}, s36, v{vX}")
        a(f"s_lshl_b32 s36, s35, 11\ns_add_u32 s36, s36, {O_OFF:#x}\nv_lshl_add_u32 v{vO0}, v0, 4, s36\nv_add_u32 v{vO1}, 0x8000, v{vO0}")
        a("s_mov_b32 s37, 0x8000")
        if wait: self.spin(O_SEL, 8, 49, ("s_cmp_lg_u32", "0"), sleep=2)
        for t in range(2):
            so = "0" if t == 0 else "s37"
            a(f"buffer_load_dwordx2 {vr(MRR+2*t,2)}, v{vMR}, s[20:23], 0 offen offset:{128*t} sc1")
            for P in range(2):
                a(f"buffer_load_dwordx4 {vr(XR+(t*2+P)*4,4)}, v{vX}, s[8:11], {so} offen offset:{64*P}")

    def p2(self):
        a, L = self.a, self.L
        a.hist = []
        a(f"{L('p2')}:")
        self.p2decode()
        a("s_sub_u32 s3, s3, 4")
        self.woaddr()
        a(f"{L('p2c')}:")
        vm = LQ(a, "vmcnt", 63); lg = LQ(a, "lgkmcnt", 14)
        ACC, OB, WB, XR, MRR = 224, 96, 64, 200, 216
        vO0, vO1, vX, vMR, vF = 4, 5, 6, 7, 8
        vW, T1, T2, vB = 10, 14, 15, 60
        acc = lambda t, u: ACC + (t * 4 + u) * 4
        self.p2a(True)
        self.spin(O_XF + 4, vF, 49, ("s_cmp_lg_u32", "0"), sleep=1)
        self.spin(O_XF + 12, vF, 49, ("s_cmp_lg_u32", "0"), sleep=1)
        self.wopart(16, 2)
        a(f"s_waitcnt vmcnt(8)\ns_branch {L('p2e')}")
        a(f"{L('p2d')}:")
        if not self.wfirst: self.wopart(48, 3)
        a(f"s_waitcnt vmcnt({24 if self.wfirst > 1 else 16})\n{L('p2e')}:")
        a(f"ds_read_b128 v[24:27], v1 offset:{O_SEL}\nds_read_b128 v[28:31], v1 offset:{O_SEL+16}")
        vm.q = []
        def late(mode, lbl):
            a(f"s_cmp_lg_u32 s59, {mode}\ns_cbranch_scc1 {lbl}\ns_barrier")
            self.wopart(48, 3); self.wopart(96, 3)
            a(f"{lbl}:")
        if self.epiw: self.spin(O_EPI, vF, 49, ("s_cmp_ge_u32", "4"), sleep=2)
        self.stamp(3)
        for t in range(2):
            m = MRR + 2 * t
            a(f"v_mov_b32 v22, v{m+1}\nv_mov_b32 v23, v{m+1}\nv_mov_b32 v{m+1}, v{m}")
            for P in range(2):
                b = XR + (t * 2 + P) * 4
                a(f"v_permlane16_swap_b32 v{b}, v{b+2}\nv_permlane16_swap_b32 v{b+1}, v{b+3}")
            for u in range(4):
                b = XR + (t * 2 + (u >> 1)) * 4 + (u & 1) * 2
                d = acc(t, u)
                for j in range(2):
                    a(f"v_lshlrev_b32 v{d+2*j}, 16, v{b+j}\nv_and_b32 v{d+2*j+1}, s39, v{b+j}")
                a(f"v_pk_add_f32 v[16:17], {vr(d,2)}, {vr(m,2)} neg_lo:[0,1] neg_hi:[0,1]")
                a(f"v_pk_add_f32 v[18:19], {vr(d+2,2)}, {vr(m,2)} neg_lo:[0,1] neg_hi:[0,1]")
                if self.fai:
                    a(f"v_pk_fma_f32 {vr(d,2)}, v[16:17], v[22:23], {vr(d,2)}\nv_pk_fma_f32 {vr(d+2,2)}, v[18:19], v[22:23], {vr(d+2,2)}")
                    continue
                a("v_cvt_pk_bf16_f32 v20, v16, v17\nv_cvt_pk_bf16_f32 v21, v18, v19")
                a("v_lshlrev_b32 v16, 16, v20\nv_and_b32 v17, s39, v20\nv_lshlrev_b32 v18, 16, v21\nv_and_b32 v19, s39, v21")
                a(f"v_pk_mul_f32 v[16:17], v[16:17], v[22:23]")
                a(f"v_pk_mul_f32 v[18:19], v[18:19], v[22:23]")
                a("v_cvt_pk_bf16_f32 v20, v16, v17\nv_cvt_pk_bf16_f32 v21, v18, v19")
                a("v_lshlrev_b32 v16, 16, v20\nv_and_b32 v17, s39, v20\nv_lshlrev_b32 v18, 16, v21\nv_and_b32 v19, s39, v21")
                a(f"v_pk_add_f32 {vr(d,2)}, {vr(d,2)}, v[16:17]\nv_pk_add_f32 {vr(d+2,2)}, {vr(d+2,2)}, v[18:19]")
            if t == 0:
                a(f"s_cmp_lg_u32 s59, 1\ns_cbranch_scc1 {L('nl3')}\ns_waitcnt vmcnt({0 if self.wfirst else 12})\ns_barrier")
                self.wopart(96, 3)
                a(f"{L('nl3')}:")
            elif self.wfirst < 2:
                a(f"s_cmp_lg_u32 s59, 1\ns_cbranch_scc1 {L('nl4')}")
                self.wopart(16, 2)
                a(f"{L('nl4')}:")
        a("s_waitcnt lgkmcnt(0)")
        for k in range(8): a(f"v_readfirstlane_b32 s{40+k}, v{24+k}")
        for u in range(4):
            w_tr_laneaddr(a, vB + u, 0, T1, T2, u, 1024)
            a(f"v_add_u32 v{vB+u}, 0x4000, v{vB+u}")
        a(f"v_mov_b32 v22, {8*256}\nv_mov_b32 v23, {8*256}\ns_mov_b32 s48, 0")
        a("v_and_b32 v14, 15, v0\nv_add_u32 v14, s35, v14\nv_add_u32 v15, 16, v14")
        for t in range(8):
            a(f"s_and_b32 s49, s{40+t}, 0x7ff\ns_sub_u32 s49, 2047, s49")
            a(f"s_sub_u32 s50, s49, s35\ns_cmp_lt_u32 s50, 32\ns_cselect_b32 s48, 1, s48")
            a(f"v_mov_b32 v16, {t*256}")
            a("v_cmp_eq_u32 vcc, s49, v14\nv_cmp_eq_u32 s[52:53], s49, v15")
            a("v_cndmask_b32 v22, v22, v16, vcc\nv_cndmask_b32 v23, v23, v16, s[52:53]")
        if self.fl128:
            a(f"v_bfe_u32 v16, v0, 3, 1\nv_mul_u32_u24 v16, {16384-64}, v16\nv_sub_u32 v24, v{vX}, v16\nv_add_u32 v25, 0x4000, v24")
        a("v_lshrrev_b32 v16, 4, v0\nv_lshlrev_b32 v16, 4, v16")
        a(f"v_add_u32 v16, {L_UPD}, v16\nv_add_u32 v22, v22, v16\nv_add_u32 v23, v23, v16")
        def wread(n, u, i2):
            off = (n % 4) * 4096 + i2 * 2048
            r = WB + (n & 1) * 16 + u * 4 + i2 * 2
            a(f"ds_read_b64_tr_b16 {vr(r,2)}, v{vW+u} offset:{off}"); lg.add(("w", n, u))
        self.stamp(2)
        late(2, L("nl2"))
        if self.own:
            a("s_lshl_b32 s49, s30, 3\ns_mul_i32 s50, s49, 187\ns_lshr_b32 s50, s50, 11\ns_add_u32 s49, s49, 7\ns_mul_i32 s49, s49, 187\ns_lshr_b32 s49, s49, 11")
            a("v_mov_b32 v16, s50\nv_mov_b32 v17, s49\nv_cmp_gt_u32 vcc, 16, v0\nv_cndmask_b32 v16, v17, v16, vcc\nv_and_b32 v17, 15, v0\nv_lshlrev_b32 v17, 7, v17")
            a(f"v_lshl_add_u32 v27, v16, 11, v17\nv_add_u32 v27, {OFLAG_OFF:#x}, v27\nv_mov_b32 v26, 0")
            if self.own == 1: a(f"s_cmp_eq_u32 s59, 0\ns_cbranch_scc1 {L('nown')}")
            if self.own == 3: a("s_waitcnt vmcnt(4)")
            a(f"s_mov_b32 exec_hi, 0\nbuffer_load_dword v26, v27, s[20:23], 0 offen sc1\ns_mov_b32 exec_hi, -1\n{L('nown')}:")
        a(f"v_mov_b32 v16, 1\ns_mov_b64 exec, 1\ns_waitcnt vmcnt(0)\nds_add_u32 v1, v16 offset:{O_WO}\ns_mov_b64 exec, -1")
        self.stamp(4)
        if self.early:
            a(f"s_cmp_lg_u32 s3, 3\ns_cbranch_scc1 {L('p2w')}")
            self.opoll(False, L('p2w'))
            a(f"{L('p2w')}:\ns_mov_b64 exec, -1")
            self.spin(O_EPI, vF, 49, ("s_cmp_ge_u32", "4"))
        a("s_mov_b32 s54, 0\ns_mov_b32 s55, 0\ns_lshl_b32 s34, s34, 1\ns_mov_b32 s57, 0")
        if self.fine:
            a("s_lshl_b32 s49, s30, 3\ns_mul_i32 s50, s49, 187\ns_lshr_b32 s50, s50, 11\ns_lshr_b32 s51, s35, 4\ns_mul_i32 s52, s51, 187\ns_lshr_b32 s52, s52, 11")
            a("s_cmp_eq_u32 s50, s52\ns_cselect_b32 s57, 0, 0xffff")
            a("s_add_u32 s49, s49, 7\ns_mul_i32 s50, s49, 187\ns_lshr_b32 s50, s50, 11\ns_add_u32 s51, s51, 1\ns_mul_i32 s52, s51, 187\ns_lshr_b32 s52, s52, 11")
            a("s_cmp_eq_u32 s50, s52\ns_cselect_b32 s50, 0, s39\ns_or_b32 s57, s57, s50")
        if self.own: a("v_cmp_ne_u32 vcc, 0, v26\ns_or_b32 s57, s57, vcc_lo")
        def sel_ld(i, guard=False, noload=False):
            A, B, C = a.newlabel("F_sa"), a.newlabel("F_sb"), a.newlabel("F_sc")
            if guard and i < 3: a(f"s_mov_b32 s38, 0\ns_cmp_eq_u32 s55, 0x5555\ns_cselect_b32 s22, 0, s22\ns_cbranch_scc1 {C}")
            a(f"{A}:\ns_andn2_b32 s49, s54, s55\ns_cbranch_scc1 {B}")
            a(f"ds_read_b32 v{vF}, v1 offset:{O_GO}\ns_waitcnt lgkmcnt(0)\nv_readfirstlane_b32 s54, v{vF}\ns_or_b32 s54, s54, s57\ns_lshr_b32 s50, s54, 16\ns_and_b32 s54, s54, s50\ns_lshr_b32 s50, s54, 1\ns_and_b32 s54, s54, s50\ns_and_b32 s54, s54, 0x5555\ns_branch {A}")
            a(f"{B}:\ns_lshl_b32 s50, s49, 16\ns_or_b32 s49, s49, s50\ns_lshr_b32 s49, s49, s34\ns_ff1_i32_b32 s49, s49\ns_add_u32 s49, s49, s34\ns_and_b32 s49, s49, 15")
            a(f"s_bitset1_b32 s55, s49\ns_lshl_b32 s38, s49, 11\ns_add_u32 s49, s49, {4 if self.wsh else 6}\ns_and_b32 s49, s49, 15\ns_lshl_b32 s{64+i}, s49, 13\n{C}:")
            if not noload:
                for st in range(4): ld(i, st)
        def ld(i, st):
            for t in range(2):
                r = OB + (i % 4) * 32 + (st * 2 + t) * 4
                a(f"buffer_load_dwordx4 {vr(r,4)}, v{vO0+t}, s[20:23], s38 offen offset:{1024*st} sc1"); vm.add(("o", i, st))
        def waddr(i):
            for u in range(4): a(f"v_add_u32 v{vW+u}, s{64+i}, v{vB+u}")
        sel_ld(0)
        self.stamp(5)
        sel_ld(1)
        waddr(0)
        self.spin(O_WO, vF, 49, ("s_cmp_ge_u32", "4"))
        if self.p2v == 2:
            W3 = [40, 64, 80]
            def wr3(n, u, i2):
                a(f"ds_read_b64_tr_b16 {vr(W3[n%3]+u*4+i2*2,2)}, v{vW+u} offset:{(n%4)*4096+i2*2048}"); lg.add(("w", n))
            for n in range(2):
                for u in range(4):
                    for i2 in range(2): wr3(n, u, i2)
                if n == 0: a("s_waitcnt lgkmcnt(4)")
            LA = self.la
            a("v_mov_b32 v9, 1")
            for i in range(2, LA): sel_ld(i)
            if self.p2p: a(f"s_setprio {self.p2p}")
            slowp = []
            def sel_parts(i):
                A, S = a.newlabel("F_sa"), a.newlabel("F_ss")
                slowp.append(f"{S}:\nds_read_b32 v{vF}, v1 offset:{O_GO}\ns_waitcnt lgkmcnt(0)\nv_readfirstlane_b32 s54, v{vF}\ns_or_b32 s54, s54, s57\ns_lshr_b32 s50, s54, 16\ns_and_b32 s54, s54, s50\ns_lshr_b32 s50, s54, 1\ns_and_b32 s54, s54, s50\ns_and_b32 s54, s54, 0x5555\ns_branch {A}")
                return [f"{A}:\ns_andn2_b32 s49, s54, s55\ns_cbranch_scc0 {S}", "s_lshl_b32 s50, s49, 16\ns_or_b32 s49, s49, s50", "s_lshr_b32 s49, s49, s34\ns_ff1_i32_b32 s49, s49",
                        "s_add_u32 s49, s49, s34\ns_and_b32 s49, s49, 15", f"s_bitset1_b32 s55, s49\ns_lshl_b32 s{36 + 2 * (i & 1)}, s49, 11", f"s_add_u32 s49, s49, 4\ns_and_b32 s49, s49, 15\ns_lshl_b32 s{64+i}, s49, 13"]
            def ld1(i, st, t):
                r = OB + (i % 4) * 32 + (st * 2 + t) * 4
                a(f"buffer_load_dwordx4 {vr(r,4)}, v{vO0+t}, s[20:23], s{36 + 2 * (i & 1)} offen offset:{1024*st} sc1"); vm.add(("o", i, st))
            if self.p2i:
                for p in sel_parts(LA): a(p)
            W4 = [40, 64, 80, 24]
            for n in range(0, 32 if self.p2c else 0, 2):
                gi, st = n // 4, n % 4
                fill = {}
                if gi + LA < 8:
                    for k in range(4): fill[4 * k + 2] = [lambda k=k: ld1(gi + LA, st + (k >> 1), k & 1)]
                if st == 2 and gi + 1 + LA < 8:
                    for k, p in zip((8, 9, 11, 12, 13, 15), sel_parts(gi + 1 + LA)): fill[k] = [p]
                if st == 0 and gi < 7:
                    for u in range(4): fill.setdefault(4 * u + 3, []).append(f"v_add_u32 v{vW+u}, s{64+gi+1}, v{vB+u}")
                if n == 4 * self.ldg - 2 or n == 4 * self.ldp - 2:
                    def fc(): a(f"s_mov_b64 exec, 1\nds_add_u32 v1, v9 offset:{O_FULL}\ns_mov_b64 exec, -1"); lg.add("c")
                    fill[4] = [fc]
                if self.upf and n == 28:
                    def f1(): a(f"ds_read_b32 v{vF}, v1 offset:{O_HELP}"); lg.add("hp")
                    fill[9] = [f1]
                if self.upf and n == 30:
                    def f2(): lg.wait("hp"); a(f"v_readfirstlane_b32 s49, v{vF}")
                    def f3():
                        lg.waitall()
                        a(f"s_cbranch_scc0 {L('upn')}")
                        for t in range(2):
                            for u in range(4): a(f"ds_read_b128 {vr(OB+(t*4+u)*4,4)}, v{22+t} offset:{64*u}")
                        a(f"s_lshl_b32 s48, s48, 1\n{L('upn')}:")
                    fill[3] = [f2]; fill[5] = ["s_mul_i32 s49, s49, s48\ns_cmp_ge_u32 s49, 3"]; fill[6] = [f3]
                vm.wait(("o", gi, st + 1))
                if n == 0: self.stamp(6); lg.waitall()
                for u in range(4):
                    lg.wait(("w", n, u))
                    for t in range(2):
                        for d in range(2):
                            dd = d ^ t
                            ob = OB + (gi % 4) * 32 + ((st + dd) * 2 + t) * 4
                            a(f"v_mfma_f32_16x16x32_bf16 {vr(acc(t,u),4)}, {vr(W4[(n+dd)%4]+u*4,4)}, {vr(ob,4)}, {vr(acc(t,u),4)}")
                            if n + 2 < 32:
                                m = n + 2 + t
                                a(f"ds_read_b64_tr_b16 {vr(W4[m%4]+u*4+d*2,2)}, v{vW+u} offset:{(m%4)*4096+d*2048}"); lg.add(("w", n + 2, u))
                            for f in fill.get(4 * u + 2 * t + d, []): f() if callable(f) else a(f)
            for n in range(32 if self.p2i and not self.p2c else 0):
                gi, st = n // 4, n % 4
                fill = {}
                if gi + LA < 8: fill[self.p2i - 1] = [lambda: ld1(gi + LA, st, 0)]; fill[self.p2i + 3] = [lambda: ld1(gi + LA, st, 1)]
                free = [k for k in range(8) if k not in fill]
                if st == 3 and gi + 1 + LA < 8:
                    for k, p in zip(free, sel_parts(gi + 1 + LA)): fill[k] = [p]
                if st == 1 and gi < 7:
                    for u in range(4): fill.setdefault(2 * u + 1, []).append(f"v_add_u32 v{vW+u}, s{64+gi+1}, v{vB+u}")
                if self.upf and n == self.upf:
                    def f1(): a(f"ds_read_b32 v{vF}, v1 offset:{O_HELP}"); lg.add("hp")
                    fill[0] = [f1]
                if self.upf and n == self.upf + 1:
                    def f2(): lg.wait("hp"); a(f"v_readfirstlane_b32 s49, v{vF}")
                    def f3():
                        a(f"s_cbranch_scc0 {L('upn')}")
                        for t in range(2):
                            for u in range(4): a(f"ds_read_b128 {vr(OB+(t*4+u)*4,4)}, v{22+t} offset:{64*u}")
                        a(f"s_lshl_b32 s48, s48, 1\n{L('upn')}:")
                    fill[1] = [f2]; fill[3] = ["s_mul_i32 s49, s49, s48\ns_cmp_ge_u32 s49, 3"]; fill[4] = [f3]
                vm.wait(("o", gi, st))
                if n == 0: self.stamp(6); lg.q = [] if self.stamps else lg.q
                lg.wait(("w", n))
                for u in range(4):
                    for t in range(2):
                        ob = OB + (gi % 4) * 32 + (st * 2 + t) * 4
                        a(f"v_mfma_f32_16x16x32_bf16 {vr(acc(t,u),4)}, {vr(W3[n%3]+u*4,4)}, {vr(ob,4)}, {vr(acc(t,u),4)}")
                        if n + 2 < 32: wr3(n + 2, u, t)
                        for f in fill.get(2 * u + t, []): f() if callable(f) else a(f)
                        if 2 * u + t == 2 and (n == 4 * self.ldg - 2 or n == 4 * self.ldp - 2):
                            a(f"s_mov_b64 exec, 1\nds_add_u32 v1, v9 offset:{O_FULL}\ns_mov_b64 exec, -1"); lg.add("c")
            self.slowp = slowp
            for n in range(0 if self.p2i else 32):
                gi, st = n // 4, n % 4
                if st == 0 and gi + LA < 8: sel_ld(gi + LA, noload=True)
                vm.wait(("o", gi, st))
                if n == 0: self.stamp(6); lg.q = [] if self.stamps else lg.q
                if st == 2 and gi < 7: waddr(gi + 1)
                lg.wait(("w", n))
                for u in range(4):
                    for t in range(2):
                        ob = OB + (gi % 4) * 32 + (st * 2 + t) * 4
                        a(f"v_mfma_f32_16x16x32_bf16 {vr(acc(t,u),4)}, {vr(W3[n%3]+u*4,4)}, {vr(ob,4)}, {vr(acc(t,u),4)}")
                        if n + 2 < 32: wr3(n + 2, u, t)
                if gi + LA < 8: ld(gi + LA, st)
                if self.ldg is not None and (n == 4 * self.ldg - 1 or (self.agg and n == 4 * self.ldp - 1)):
                    a(f"s_mov_b64 exec, 1\nds_add_u32 v1, v9 offset:{O_FULL}\ns_mov_b64 exec, -1"); lg.add("c")
        else:
            for u in range(4):
                for i2 in range(2): wread(0, u, i2)
            for i in range(2, 4): sel_ld(i)
        if self.p2v == 2: pass
        elif self.p2loop:
            if self.stamps:
                a("s_waitcnt vmcnt(30)"); self.stamp(6)
            lg.waitall()
            def body():
                for n in range(16):
                    gi, st = n // 4, n % 4
                    vm.wait(("o", gi, st))
                    if st == 3 and gi < 3: waddr(gi + 1)
                    if st == 3 and gi == 3: waddr(0)
                    for u in range(4):
                        lg.wait(("w", n, u))
                        for t in range(2):
                            ob = OB + gi * 32 + (st * 2 + t) * 4
                            wb = WB + (n & 1) * 16 + u * 4
                            a(f"v_mfma_f32_16x16x32_bf16 {vr(acc(t,u),4)}, {vr(wb,4)}, {vr(ob,4)}, {vr(acc(t,u),4)}")
                            wread((n + 1) % 16, u, t)
                    if st == 3:
                        if gi == 3: a(f"s_cmp_eq_u32 s55, 0x5555\ns_cbranch_scc1 {L('p2x')}")
                        sel_ld(gi, True)
            q0 = list(vm.q)
            save = (list(a.lines), list(a.hist), a.nlabel)
            body(); ql = list(lg.q)
            assert vm.q == q0, (vm.q, q0)
            a.lines, a.hist, a.nlabel = save
            lg.q = ql
            a(f"{L('p2l')}:")
            body()
            assert lg.q == ql
            a(f"s_branch {L('p2l')}\n{L('p2x')}:\ns_waitcnt vmcnt(0) lgkmcnt(0)")
        else:
            for n in range(32):
                gi, st = n // 4, n % 4
                vm.wait(("o", gi, st))
                if n == 0: self.stamp(6); lg.q = [] if self.stamps else lg.q
                if st == 3 and gi < 7: waddr(gi + 1)
                for u in range(4):
                    lg.wait(("w", n, u))
                    for t in range(2):
                        ob = OB + (gi % 4) * 32 + (st * 2 + t) * 4
                        wb = WB + (n & 1) * 16 + u * 4
                        a(f"v_mfma_f32_16x16x32_bf16 {vr(acc(t,u),4)}, {vr(wb,4)}, {vr(ob,4)}, {vr(acc(t,u),4)}")
                        if n + 1 < 32: wread(n + 1, u, t)
                if st == 3 and gi + 4 < 8: sel_ld(gi + 4)
        self.stamp(7)
        NOUPD = L("noupd")
        a(f"s_cmp_eq_u32 s48, 0\ns_cbranch_scc1 {NOUPD}")
        if self.upf: a(f"s_cmp_eq_u32 s48, 2\ns_cbranch_scc1 {L('upr')}")
        self.spin(O_HELP, vF, 49, ("s_cmp_ge_u32", "3"))
        for t in range(2):
            for u in range(4): a(f"ds_read_b128 {vr(OB+(t*4+u)*4,4)}, v{22+t} offset:{64*u}")
        if self.upf:
            a(f"{L('upr')}:"); a.flush(8)
        a("s_waitcnt lgkmcnt(0)")
        for t in range(2):
            for u in range(4):
                d, o = acc(t, u), OB + (t * 4 + u) * 4
                a(f"v_pk_add_f32 {vr(d,2)}, {vr(d,2)}, {vr(o,2)}\nv_pk_add_f32 {vr(d+2,2)}, {vr(d+2,2)}, {vr(o+2,2)}")
        a(f"{NOUPD}:")
        a.flush(8)
        for t in range(2):
            for P in range(2):
                b = XR + (t * 2 + P) * 4
                for e in range(2):
                    d = acc(t, 2 * P + e)
                    a(f"v_cvt_pk_bf16_f32 v{b+2*e}, v{d}, v{d+1}\nv_cvt_pk_bf16_f32 v{b+2*e+1}, v{d+2}, v{d+3}")
        if self.fl128:
            for t in range(2):
                for P in range(2):
                    b = XR + (t * 2 + P) * 4
                    a(f"v_permlane16_swap_b32 v{b}, v{b+2}\nv_permlane16_swap_b32 v{b+1}, v{b+3}")
            for t in range(2):
                so = "0" if t == 0 else "s37"
                A, B = XR + t * 8, XR + t * 8 + 4
                for r in range(4): a(f"v_mov_b32 v{16+r}, v{A+r}")
                for r in range(4): a(f"v_mov_b32_dpp v{A+r}, v{B+r} row_ror:8 row_mask:0xf bank_mask:0xc")
                a(f"buffer_store_dwordx4 {vr(A,4)}, v24, s[16:19], {so} offen {self.ofl}")
                for r in range(4): a(f"v_mov_b32_dpp v{B+r}, v{16+r} row_ror:8 row_mask:0xf bank_mask:0x3")
                a(f"buffer_store_dwordx4 {vr(B,4)}, v25, s[16:19], {so} offen {self.ofl}")
        else:
            for t in range(2):
                so = "0" if t == 0 else "s37"
                for P in range(2):
                    b = XR + (t * 2 + P) * 4
                    a(f"v_permlane16_swap_b32 v{b}, v{b+2}\nv_permlane16_swap_b32 v{b+1}, v{b+3}")
                    a(f"buffer_store_dwordx4 {vr(b,4)}, v{vX}, s[16:19], {so} offen offset:{64*P} {self.ofl}")
        self.finish()
        for p in self.slowp: a(p)
        a.hist = []

    def help2(self):
        a, L = self.a, self.L
        a(f"{L('help2')}:")
        self.p2decode()
        srd(a, 20, 74, WS_SIZE)
        if self.hg2: a(f"s_cmp_lt_u32 s29, 24\ns_cbranch_scc1 {L('nhg')}")
        if self.hgate: self.spin(O_WO, 16, 49, ("s_cmp_ge_u32", str(self.hgate)), sleep=1)
        if self.hg2: a(f"{L('nhg')}:")
        a(f"s_cmp_lg_u32 s3, 0\ns_cbranch_scc1 {L('h2t')}\n{L('h2p')}:")
        self.opoll(True, L('h2e'))
        a(f"{L('h2t')}:")
        a("s_lshl_b32 s35, s30, 7\ns_lshl_b32 s36, s3, 2\nv_add_u32 v2, s36, v1")
        a(f"ds_read_b32 v10, v2 offset:{O_SEL+20}\nds_read2_b32 v[2:3], v2 offset0:{O_SEL//4-1} offset1:{O_SEL//4+2}")
        a("v_lshrrev_b32 v4, 4, v0\nv_lshlrev_b32 v4, 15, v4\nv_and_b32 v5, 15, v0\nv_lshl_add_u32 v4, v5, 4, v4")
        a(f"s_lshl_b32 s36, s32, 8\ns_add_u32 s36, s36, {PART_OFF:#x}\nv_add_u32 v4, s36, v4")
        if self.dl: a(f"v_and_b32 v6, 1, v5\nv_lshrrev_b32 v5, 1, v5\nv_lshl_add_u32 v5, v6, 5, v5\nv_lshlrev_b32 v5, 2, v5\nv_add_u32 v5, {L_UPD}, v5")
        else: a(f"v_lshlrev_b32 v5, 4, v5\nv_add_u32 v5, {L_UPD}, v5")
        a(f"v_min_u32 v7, 55, v0\nv_lshlrev_b32 v7, 7, v7\nv_add_u32 v7, {PFLAG_OFF:#x}, v7")
        a("s_waitcnt lgkmcnt(0)\nv_readfirstlane_b32 s60, v2\nv_readfirstlane_b32 s61, v3\nv_readfirstlane_b32 s62, v10\ns_sub_u32 s36, s3, 1")
        LOOP, NEXT = L("hl"), L("hn")
        a(f"{LOOP}:")
        a("s_and_b32 s49, s60, 0x7ff\ns_sub_u32 s49, 2047, s49\ns_sub_u32 s49, s49, s35")
        a(f"s_cmp_lt_u32 s49, 128\ns_cbranch_scc0 {NEXT}")
        if self.agg:
            srd(a, 24, 72, 0x100)
            self.spin(O_FULL, 8, 49, ("s_cmp_ge_u32", "4"), sleep=2)
            a("v_mov_b32 v7, 64")
            self.gpoll(self.pl(8, 7, "s[24:27]"), 8, "v_cmp_ne_u32 vcc, 0, v8", 49, 12)
            self.spin(O_FULL, 8, 49, ("s_cmp_ge_u32", "8"), sleep=2)
        else:
            if self.pmask:
                a(f"s_mov_b32 s49, 0\n{L('pp')}:\n{self.pl(8, 7, 's[20:23]')}\ns_waitcnt vmcnt(0)\nv_cmp_eq_u32 vcc, 0, v8\ns_add_u32 s49, s49, 1\ns_cmp_eq_u64 vcc, 0\ns_cbranch_scc1 {L('pq')}")
                a(f"s_cmp_lt_u32 s49, {POLL_MAX:#x}\ns_cbranch_scc0 {L('pq')}\ns_mov_b64 exec, vcc\ns_sleep {self.psl}\ns_branch {L('pp')}\n{L('pq')}:\ns_mov_b64 exec, -1")
            else:
                self.gpoll(self.pl(8, 7, "s[20:23]"), 8, "v_cmp_ne_u32 vcc, 0, v8", 49, self.psl)
            if self.ldg is not None: self.spin(O_FULL, 8, 49, ("s_cmp_ge_u32", "4"), sleep=2)
        a("s_lshl_b32 s37, s36, 12")
        for i in range(14):
            a(f"buffer_load_dwordx4 {vr(16+4*i,4)}, v4, s[20:23], s37 offen sc1")
            if i < 13: a("s_add_u32 s37, s37, 0x20000")
        a("s_lshr_b32 s50, s60, 16\ns_xor_b32 s51, s50, 0x8000\ns_xor_b32 s52, s50, 0xffff\ns_bitcmp1_b32 s50, 15\ns_cselect_b32 s50, s51, s52\ns_lshl_b32 s50, s50, 16")
        a("v_mov_b32 v8, s50\nv_mul_f32 v8, 0xbfb8aa3b, v8\nv_exp_f32 v8, v8\nv_add_f32 v8, 1.0, v8\nv_rcp_f32 v8, v8")
        a("v_cvt_pk_bf16_f32 v8, v8, v8\nv_and_b32 v8, s39, v8")
        for i in range(1, 14):
            a(f"s_waitcnt vmcnt({13-i})")
            a(f"v_pk_add_f32 v[16:17], v[16:17], {vr(16+4*i,2)}\nv_pk_add_f32 v[18:19], v[18:19], {vr(18+4*i,2)}")
        for sw in ("v_permlane32_swap_b32", "v_permlane16_swap_b32"):
            for i in range(4): a(f"v_mov_b32 v{20+i}, v{16+i}")
            for i in range(4): a(f"{sw} v{16+i}, v{20+i}")
            a("v_pk_add_f32 v[16:17], v[16:17], v[20:21]\nv_pk_add_f32 v[18:19], v[18:19], v[22:23]")
        a("v_cvt_pk_bf16_f32 v20, v16, v17\nv_cvt_pk_bf16_f32 v21, v18, v19")
        a("v_lshlrev_b32 v16, 16, v20\nv_and_b32 v17, s39, v20\nv_lshlrev_b32 v18, 16, v21\nv_and_b32 v19, s39, v21")
        for i in range(4): a(f"v_mul_f32 v{16+i}, v{16+i}, v8")
        a("v_cvt_pk_bf16_f32 v20, v16, v17\nv_cvt_pk_bf16_f32 v21, v18, v19")
        a("v_lshlrev_b32 v16, 16, v20\nv_and_b32 v17, s39, v20\nv_lshlrev_b32 v18, 16, v21\nv_and_b32 v19, s39, v21")
        a("s_lshl_b32 s37, s36, 8\nv_add_u32 v6, s37, v5")
        a("ds_write2_b32 v6, v16, v17 offset1:8\nds_write2_b32 v6, v18, v19 offset0:16 offset1:24" if self.dl else "ds_write_b128 v6, v[16:19]")
        a(f"{NEXT}:")
        a(f"s_mov_b32 s60, s61\ns_mov_b32 s61, s62\ns_add_u32 s36, s36, 3\ns_cmp_lt_u32 s36, 8\ns_cbranch_scc1 {LOOP}")
        a(f"v_mov_b32 v9, 1\ns_mov_b64 exec, 1\ns_waitcnt lgkmcnt(0)\nds_add_u32 v1, v9 offset:{O_HELP}")
        if self.npoll > 1: a(f"s_mov_b64 exec, -1\ns_cmp_lt_u32 s3, {self.npoll}\ns_cbranch_scc1 {L('h2p')}")
        a(f"{L('h2e')}:")
        self.finish()

    def cons(self):
        a, L = self.a, self.L
        a(f"{L('cons')}:")
        ACC = 112
        acc = lambda t, c: ACC + (t * 6 + c) * 4
        XF, WF = 40, 64
        vXa, vXh, vWa, vMk, vFR, vCnt, vFA, vF = 2, 4, 6, 8, 9, 10, 11, 12
        cCSW, cCVW, cXFW, cONE, cMM, cM4, cXCH, cSEL, cNEG, cOST, cRK0, cRK1 = 13, 14, 15, 16, 17, 18, 19, 20, 24, 25, 26, 27
        cCSR, cCVR, cRSQ, cXFR, cXCW = 28, 29, 30, 31, 32
        CSV = 34
        MM, RK = 64, 76
        RSQ = 2
        M4 = 88
        KP, VPV = 56, 60
        csq = lambda c: XF + 4 * c
        mm = lambda t: MM + 2 * t
        rk = lambda t: RK + 2 * t
        if self.ch:
            csq = lambda c: {2: 48, 3: 52, 0: 76, 1: 80}[c]
            mm = lambda t: (72, 68, 64)[t >> 1] + 2 * (t & 1)
            rk = lambda t: 40 + 2 * t if t < 4 else 2 * t
        T = 38
        if self.cop:
            x0, xn, wn = self.cop
            a(f"s_and_b32 s36, s31, 3\ns_mul_i32 s36, s36, 48\ns_add_u32 s36, s36, s33\nv_add_u32 v5, s36, v0\nv_max_i32 v5, 0, v5\nv_lshlrev_b32 v5, 11, v5\ns_add_u32 s36, s3, {x0}\ns_lshl_b32 s36, s36, 7")
            a(f"s_cmp_ge_u32 s30, 6\ns_cselect_b32 s37, 6, 0\ns_sub_u32 s37, s30, s37\ns_lshl_b32 s37, s37, 16\ns_mul_i32 s38, s3, 393216\ns_add_u32 s37, s37, s38\ns_lshl_b32 s38, s31, 7\ns_add_u32 s37, s37, s38\nv_lshlrev_b32 v6, 11, v0")
            a(f"s_cmp_lt_u32 s3, {xn}\ns_cselect_b32 s10, 0x400000, 0\ns_cmp_lt_u32 s3, {wn}\ns_cselect_b32 s14, 0x600000, 0\ns_mov_b32 s11, 0x20000\ns_mov_b32 s15, 0x20000\ns_waitcnt lgkmcnt(0)")
            a("s_mov_b32 s8, s4\ns_mov_b32 s9, s5\ns_mov_b32 s12, s6\ns_mov_b32 s13, s7\ns_mov_b32 exec_hi, 0xffff\nbuffer_load_dword v11, v5, s[8:11], s36 offen\ns_mov_b32 exec_hi, 0")
            if wn: a("buffer_load_dword v11, v6, s[12:15], s37 offen")
            a("s_mov_b32 exec_hi, -1")
        a(f"v_lshl_add_u32 v2, v0, 2, v1\nv_mov_b32 v3, 0x3f803f80\nv_cmp_gt_u32 vcc, 16, v0\nv_mov_b32 v4, 0\nv_cndmask_b32 v3, v3, 0, vcc")
        a(f"ds_write_b32 v2, v3\nds_write_b32 v2, v4 offset:{O_SEL}\nds_write_b32 v2, v4 offset:{L_UPD+2048-MISC}\ns_and_b32 s40, s3, 1\ns_lshr_b32 s41, s3, 1")
        if self.codepf:
            a(f"s_cmp_lg_u32 s29, 0\ns_cbranch_scc1 {L('ncp')}\ns_getpc_b64 s[8:9]\n{L('pc')}:")
            a(f"s_sub_u32 s8, s8, {L('pc')}-{KNAME}\ns_subb_u32 s9, s9, 0\ns_mov_b32 s10, {L('end')}-{KNAME}\ns_lshl_b32 s36, s3, 13")
            a(f"v_lshl_add_u32 v5, v0, 7, s36\nv_min_u32 v5, s10, v5\nv_mov_b32 v7, s9\nv_add_co_u32 v6, vcc, s8, v5\nv_addc_co_u32 v7, vcc, 0, v7, vcc\nglobal_load_dword v9, v[6:7], off\n{L('ncp')}:")
        a("s_waitcnt lgkmcnt(0)\ns_mov_b32 s64, 0")
        srd(a, 20, 74, WS_SIZE)
        if self.zg:
            a(f"s_lshl_b32 s65, s2, 2\ns_add_u32 s65, s65, s3\ns_cmp_lg_u32 s65, 32\ns_cbranch_scc1 {L('nzg')}\nv_lshlrev_b32 v5, 7, v0\ns_mov_b32 s36, {OFLAG_OFF:#x}")
            for k in range(5): a("buffer_store_dword v4, v5, s[20:23], s36 offen sc1\ns_add_u32 s36, s36, 0x2000")
            a(f"{L('nzg')}:")
        I, Gp = 38, 39
        a(f"v_and_b32 v{I}, 15, v0\nv_lshrrev_b32 v{Gp}, 4, v0\nv_lshrrev_b32 v34, 1, v{I}\nv_xor_b32 v34, v{Gp}, v34")
        a(f"v_lshlrev_b32 v34, 4, v34\nv_lshl_add_u32 v{vXa}, v{I}, 7, v34\ns_mul_i32 s42, s41, 12288\nv_add_u32 v{vXa}, s42, v{vXa}")
        a(f"v_xor_b32 v{vXa+1}, 64, v{vXa}")
        a(f"v_or_b32 v34, s41, v{I}\nv_cmp_eq_u32 vcc, 0, v34\nv_mov_b32 v35, {L_ONES}")
        a(f"v_cndmask_b32 v{vXh}, v{vXa}, v35, vcc\nv_cndmask_b32 v{vXh+1}, v{vXa+1}, v35, vcc\nv_cndmask_b32 v{vMk}, 1, 0, vcc")
        a(f"s_lshl_b32 s42, s40, 9\ns_add_u32 s42, s42, {L_CS}\nv_lshl_add_u32 v{cCSR}, v{Gp}, 4, s42\nv_lshl_add_u32 v{cCVR}, v{I}, 2, s42")
        a(f"v_lshlrev_b32 v36, 4, v0\nv_add_u32 v36, {L_DUMMY}, v36\nv_cndmask_b32 v{cCSW}, v36, v{cCSR}, vcc")
        a(f"v_or_b32 v34, s41, v{Gp}\nv_cmp_eq_u32 vcc, 0, v34\ns_lshl_b32 s43, s40, 3\nv_add_u32 v{cXFR}, s43, v1\nv_cndmask_b32 v{cCVW}, v36, v{cCVR}, vcc")
        a(f"v_or_b32 v34, s41, v0\nv_cmp_eq_u32 vcc, 0, v34\nv_mov_b32 v{cONE}, 1\nv_cndmask_b32 v{cXFW}, v36, v{cXFR}, vcc")
        a(f"s_lshl_b32 s42, s40, 11\ns_add_u32 s42, s42, {L_XCH}\nv_lshl_add_u32 v{cXCH}, v0, 4, s42\ns_cmp_eq_u32 s41, 0\ns_cselect_b64 vcc, -1, 0\nv_cndmask_b32 v{cXCW}, v36, v{cXCH}, vcc")
        a("s_mul_i32 s42, s41, 96")
        a(f"v_add_u32 v34, s42, v{I}\nv_lshlrev_b32 v{cMM}, 3, v34\nv_add_u32 v{cMM}, {L_MRI}, v{cMM}\nv_lshlrev_b32 v{cRSQ}, 2, v34\nv_add_u32 v{cRSQ}, {L_M+768}, v{cRSQ}")
        a(f"v_lshlrev_b32 v{cM4}, 2, v{Gp}\nv_add_u32 v{cM4}, s42, v{cM4}\nv_lshlrev_b32 v{cM4}, 2, v{cM4}\nv_add_u32 v{cM4}, {L_M}, v{cM4}")
        a(f"v_and_b32 v34, 1, v{I}\nv_lshl_add_u32 v35, v{Gp}, 2, v34\nv_add_u32 v36, 2, v35")
        a(f"v_cmp_eq_u32 s[50:51], 1, v34\nv_cmp_le_u32 s[52:53], v35, v{I}\nv_cmp_le_u32 s[54:55], v36, v{I}")
        a(f"s_lshl_b32 s42, s42, 2\ns_add_u32 s42, s42, {L_M+768}")
        a(f"v_lshl_add_u32 v35, v35, 2, s42\nv_lshl_add_u32 v36, v36, 2, s42\nv_subrev_u32 v34, 64, v35\nv_subrev_u32 v37, 64, v36")
        a(f"v_cndmask_b32 v{cRK0}, v34, v35, s[52:53]\nv_cndmask_b32 v{cRK1}, v37, v36, s[54:55]")
        a("v_mov_b32 v34, 0x0c0c0504\nv_mov_b32 v35, 0x05040c0c\nv_cndmask_b32 v34, v34, v35, s[50:51]")
        a("v_mov_b32 v35, 0x0c0c0706\nv_mov_b32 v36, 0x07060c0c\nv_cndmask_b32 v35, v35, v36, s[50:51]\nv_mov_b32 v36, 0x0c0c0c0c")
        a(f"v_cndmask_b32 v{cSEL}, v34, v36, s[52:53]\nv_cndmask_b32 v{cSEL+1}, v35, v36, s[54:55]")
        a(f"v_cndmask_b32 v{cSEL+2}, v36, v34, s[52:53]\nv_cndmask_b32 v{cSEL+3}, v36, v35, s[54:55]")
        a("s_or_b32 s42, s30, s41\ns_cmp_eq_u32 s42, 0\ns_cselect_b64 s[56:57], -1, 0")
        a("s_andn2_b64 s[58:59], s[56:57], s[54:55]\ns_andn2_b64 s[56:57], s[56:57], s[52:53]")
        a(f"v_mov_b32 v{cNEG}, {NEG_BIG:#x}\ns_mov_b32 s61, {SM_C:#x}")
        a("s_mul_i32 s42, s30, 11\ns_mul_i32 s43, s41, 6\ns_add_u32 s42, s42, s43\ns_lshl_b32 s42, s42, 15")
        a(f"s_lshl_b32 s43, s31, 1\ns_add_u32 s43, s43, s40\ns_lshl_b32 s43, s43, 10\ns_add_u32 s42, s42, s43\ns_add_u32 s42, s42, {O_OFF-32768:#x}")
        a(f"v_lshl_add_u32 v{cOST}, v0, 4, s42")
        a(f"s_lshl_b32 s42, s30, 11\ns_lshl_b32 s43, s31, 7\ns_add_u32 s42, s42, s43\ns_add_u32 s42, s42, {OFLAG_OFF:#x}\nv_mov_b32 v33, s42")
        for t in range(1, 6): a(f"s_mov_b32 s{65+t}, {t*32768}")
        a("s_lshl_b32 s42, s40, 1\ns_add_u32 s43, s42, 1")
        w_tr_laneaddr(a, vWa, 0, 34, 35, 0, 2048, u_sreg=42)
        w_tr_laneaddr(a, vWa + 1, 0, 34, 35, 0, 2048, u_sreg=43)
        a(f"s_mov_b32 s44, 0\ns_mov_b32 s45, 0\ns_mov_b32 s62, {SLOT}\ns_mov_b32 s63, {-2*SLOT}\ns_setprio 2")
        for r in range(ACC, 256, 2): a(f"v_pk_mul_f32 {vr(r,2)}, v[10:11], 0" if False else f"v_mov_b64 {vr(r,2)}, 0")
        lg = LQ(a, "lgkmcnt", 14)
        def xread(t, h):
            va = (vXh if t == 0 else vXa) + h
            a(f"ds_read_b128 {vr(XF+4*t,4)}, v{va} offset:{2048*t}"); lg.add(("x", t))
        def wread(c, i2, h):
            seg, e = c >> 1, c & 1
            a(f"ds_read_b64_tr_b16 {vr(WF+h*24+c*4+i2*2,2)}, v{vWa+e} offset:{24576+seg*8192+h*4096+i2*1024}"); lg.add(("w", h, c))
        F0 = L("f0")
        if self.zg:
            srd(a, 24, 72, 0x100)
            a(f"s_cmp_lg_u32 s65, 32\ns_cbranch_scc1 {L('nzh')}\nv_mov_b32 v34, 0\ns_mov_b64 exec, 1\ns_waitcnt vmcnt(0)\nbuffer_store_dword v{cONE}, v34, s[24:27], 0 offen sc1\ns_mov_b64 exec, -1\n{L('nzh')}:")
        a("s_barrier")
        self.stamp(2)
        if self.stamps: a("s_memtime s[98:99]\ns_waitcnt lgkmcnt(0)\ns_mov_b32 s94, s98")
        def sec(k, first=False): pass
        if self.ch:
            X2 = lambda t, h: 64 + 8 * t + 4 * h
            W2 = lambda c, h: 40 + 8 * (c % 3) + 4 * h
            def xr(t, h):
                a(f"ds_read_b128 {vr(X2(t,h),4)}, v{(vXh if t == 0 else vXa)+h} offset:{2048*t}"); lg.add(("x", t))
            def wr(c, h, i2):
                a(f"ds_read_b64_tr_b16 {vr(W2(c,h)+2*i2,2)}, v{vWa+(c&1)} offset:{24576+(c>>1)*8192+h*4096+i2*1024}"); lg.add(("w", c))
            def ds(txt, tag):
                def f():
                    a(txt); lg.add(tag)
                return f
            def after(tag, txt):
                def f():
                    lg.wait(tag); a(txt)
                return f
            def mf(c, t, h):
                w, x = vr(W2(c, h), 4), vr(X2(t, h), 4)
                A, B = (w, x) if c < 4 else (x, w)
                a(f"v_mfma_f32_16x16x32_bf16 {vr(acc(t,c),4)}, {A}, {B}, {vr(acc(t,c),4)}")
            HI = [(h, i2) for h in range(2) for i2 in range(2)]
            for h, i2 in HI: wr(0, h, i2)
            for t in range(6):
                for h in range(2): xr(t, h)
                if t < 4: wr(1, *HI[t])
                if t == 2: a("s_waitcnt lgkmcnt(6)")
            LOOP, LAST = L("loop"), L("last")
            fb = {(0, 0): "s_cmp_eq_u32 s45, 2\ns_cselect_b32 s47, s63, s62", (0, 1): "s_cselect_b32 s45, -1, s45\ns_add_u32 s45, s45, 1",
                  (1, 0): f"s_add_u32 s44, s44, 1\nv_add_u32 v{vXa}, s47, v{vXa}", (1, 1): f"v_mad_i32_i24 v{vXh}, v{vMk}, s47, v{vXh}",
                  (1, 2): f"v_add_u32 v{vXa+1}, s47, v{vXa+1}", (1, 3): f"v_mad_i32_i24 v{vXh+1}, v{vMk}, s47, v{vXh+1}",
                  (2, 5): ds(f"ds_read_b32 v{vF}, v1 offset:{O_SEL}", "flag"),
                  (3, 4): f"v_add_u32 v{vWa}, s47, v{vWa}\nv_add_u32 v{vWa+1}, s47, v{vWa+1}", (3, 5): "s_cmp_eq_u32 s44, 16"}
            qmid = []
            def body():
                for c in range(6):
                    if c == 4:
                        a(f"s_cbranch_scc1 {LAST}"); qmid[:] = list(lg.q)
                    wl = list(HI)
                    lg.wait(("w", c))
                    for t in range(6):
                        if c == 0: lg.wait(("x", t))
                        for h in range(2):
                            hh = h ^ (t & self.snk)
                            mf(c, t, hh)
                            if c == 5: xr(t, hh)
                            if h == 1 and wl and not (c == 4 and t < self.chb): wr((c + 2) % 6, *wl.pop(0))
                            if (c, t, h) == (4, self.chb, 0):
                                lg.wait(("w", 5)); a("s_barrier")
                            if h == 0 and (c, t) in fb:
                                f = fb[(c, t)]
                                f() if callable(f) else a(f)
                    assert not wl
            q0 = list(lg.q)
            save = (list(a.lines), list(a.hist), a.nlabel)
            body(); q_end = list(lg.q)
            a.lines, a.hist, a.nlabel = save
            assert q_end[-16:] == q0[-16:], (q_end, q0)
            lg.q = q_end
            def slow(lbl, back, addr, off):
                a(f"{lbl}:\nds_read_b32 v{vF}, v{addr} offset:{off}\ns_waitcnt lgkmcnt(0)\nv_cmp_ne_u32 vcc, 0, v{vF}\ns_cmp_eq_u64 vcc, 0\ns_cbranch_scc0 {back}\ns_branch {lbl}")
            a(f"s_branch {LOOP}")
            slow(L("sp2"), L("ok2"), 1, O_SEL)
            slow(L("sp3"), L("ok3"), cXFR, O_XF)
            slow(L("sp4"), L("ok4"), cXFR, O_XF + 4)
            a(f"{LOOP}:")
            body()
            assert lg.q == q_end, (lg.q, q_end)
            a(f"s_branch {LOOP}")
            a.hist = []
            a(f"{LAST}:")
            lg.q = list(qmid)
            fl = {m: [] for m in range(24)}
            fl[0] = [after("flag", f"v_cmp_ne_u32 vcc, 0, v{vF}"), after(("w", 5), "s_barrier")]
            fl[1] = [f"s_cmp_eq_u64 vcc, 0\ns_cbranch_scc1 {L('sp2')}\n{L('ok2')}:"]
            for c in range(4): fl[2 + c].append(ds(f"ds_write_b128 v{cCSW}, {vr(acc(0,c),4)} offset:{64*c}", "csw"))
            for p in range(3): fl[2 + p].append(ds(f"ds_read2_b32 {vr(RSQ+2*p,2)}, v{cRSQ} offset0:{32*p} offset1:{32*p+16}", "rsq"))
            MMR = lambda p: ds(f"ds_read2_b64 {vr(mm(2*p),4)}, v{cMM} offset0:{32*p} offset1:{32*p+16}", "st")
            fl[5].append(MMR(2)); fl[6].append(MMR(1)); fl[16].append(MMR(0))
            for e in range(2): fl[6 + e].append(ds(f"ds_write_b32 v{cCVW}, v{acc(0,4+e)} offset:{256+64*e}", "csw"))
            fl[7].append(ds(f"ds_write_b32 v{cXFW}, v{cONE} offset:{O_XF}", "csw"))
            for t, m in enumerate((8, 9, 10, 12, 13, 14)):
                fl[m] += [ds(f"ds_read_b32 v{rk(t)}, v{cRK0} offset:{64*t}", "st"), ds(f"ds_read_b32 v{rk(t)+1}, v{cRK1} offset:{64*t}", "st")]
            fl[11].append(ds(f"ds_read_b32 v{vF}, v{cXFR} offset:{O_XF}", "flag"))
            fl[15].append(after("flag", f"v_cmp_eq_u32 vcc, 1, v{vF}\nv_mul_f32 v{RSQ}, s61, v{RSQ}"))
            fl[16].append(f"s_cmp_eq_u64 vcc, 0\ns_cbranch_scc1 {L('sp3')}\n{L('ok3')}:")
            for n, c in enumerate((2, 3, 0, 1)):
                fl[17 + n] += [ds(f"ds_read_b128 {vr(csq(c),4)}, v{cCSR} offset:{64*c}", ("cs", c)), f"v_mul_f32 v{RSQ+1+n}, s61, v{RSQ+1+n}"]
            for e in range(2): fl[21 + e].append(ds(f"ds_read2_b32 {vr(CSV+2*e,2)}, v{cCVR} offset0:{64+16*e} offset1:{64+16*e}", "csv"))
            fl[21].append(f"v_mul_f32 v{RSQ+5}, s61, v{RSQ+5}")
            lg.wait(("w", 4))
            for n, (c, t) in enumerate([(4, 0), (5, 0)] + [(4, t) for t in range(1, 6)] + [(5, t) for t in range(1, 6)]):
                for h in range(2):
                    mf(c, t, h ^ (t & self.snk))
                    for f in fl[2 * n + h]: f() if callable(f) else a(f)
        else:
            xread(0, 0)
            for c in range(6):
                for i2 in range(2): wread(c, i2, 0)
            a("s_waitcnt lgkmcnt(8)")
            for t in range(1, 6): xread(t, 0)
            lg.q = []
            a("s_waitcnt lgkmcnt(2)")
            LOOP, OK, SP, LAST = L("loop"), L("ok"), L("spin"), L("last")
            BAR = self.bar
            def phase(h, fill, prefetch=True):
                nh = 1 - h
                wl = [(c, i2) for c in range(6) for i2 in range(2)] if prefetch else []
                pend = []
                lg.wait(("w", h, 5))
                for t in range(6):
                    lg.wait(("x", t))
                    for c in range(6):
                        w, x = vr(WF + h * 24 + c * 4, 4), vr(XF + 4 * t, 4)
                        A, B = (w, x) if c < 4 else (x, w)
                        a(f"v_mfma_f32_16x16x32_bf16 {vr(acc(t,c),4)}, {A}, {B}, {vr(acc(t,c),4)}")
                        if h == 1 and (t, c) == BAR:
                            lg.wait(("x", 5)); a("s_barrier")
                        elif h == 1 and (t, c) < BAR: pass
                        elif pend: xread(pend.pop(0), nh)
                        elif wl and c < 5 and ((h == 0 and t >= 1 and c % 2 == 0) or (h == 1 and (c % 2 == 0 or c == 3 and t < 4))):
                            cc, i2 = wl.pop(0); wread(cc, i2, nh)
                        for f in fill.get((t, c), []):
                            f() if callable(f) else a(f)
                    if prefetch:
                        if h == 1 and (t, 5) <= BAR: pend.append(t)
                        else: xread(t, nh)
                assert not wl and not pend
            def ds(txt, tag):
                def f():
                    a(txt); lg.add(tag)
                return f
            def after(tag, txt):
                def f():
                    lg.wait(tag); a(txt)
                return f
            f0 = {(0, 0): ["s_cmp_eq_u32 s45, 2\ns_cselect_b32 s47, s63, s62"], (0, 1): ["s_cselect_b32 s45, -1, s45\ns_add_u32 s45, s45, 1"],
                  (0, 2): [f"s_add_u32 s44, s44, 1\nv_add_u32 v{vXa}, s47, v{vXa}"],
                  (0, 3): [f"v_mad_i32_i24 v{vXh}, v{vMk}, s47, v{vXh}"], (4, 3): [ds(f"ds_read_b32 v{vF}, v1 offset:{O_SEL}", "flag")],
                  (5, 0): [f"v_add_u32 v{vWa}, s47, v{vWa}\nv_add_u32 v{vWa+1}, s47, v{vWa+1}"], (5, 4): ["s_cmp_eq_u32 s44, 16"]}
            f1 = {(0, 0): [f"v_add_u32 v{vXa+1}, s47, v{vXa+1}"], (0, 1): [f"v_mad_i32_i24 v{vXh+1}, v{vMk}, s47, v{vXh+1}"]}
            qmid = []
            def body():
                phase(0, f0)
                a(f"s_cbranch_scc1 {LAST}")
                qmid[:] = list(lg.q)
                phase(1, f1)
            save = (list(a.lines), list(a.hist), a.nlabel)
            body(); q_end = list(lg.q)
            a.lines, a.hist, a.nlabel = save
            assert q_end[-2:] == [("x", 4), ("x", 5)], q_end
            lg.q = q_end
            def slow(lbl, back, addr, off, val):
                a(f"{lbl}:\ns_cmp_lg_u32 s64, 0\ns_cbranch_scc1 {back}")
                a(f"ds_read_b32 v{vF}, v{addr} offset:{off}\ns_waitcnt lgkmcnt(0)\nv_cmp_ne_u32 vcc, 0, v{vF}\ns_cmp_eq_u64 vcc, 0\ns_cbranch_scc0 {back}\ns_branch {lbl}")
            a(f"s_branch {LOOP}")
            slow(L("sp2"), L("ok2"), 1, O_SEL, 0)
            slow(L("sp3"), L("ok3"), cXFR, O_XF, 1)
            slow(L("sp4"), L("ok4"), cXFR, O_XF + 4, 1)
            if self.lal is not None:
                a.raw(".p2align 6, 0")
                a.lines[-1] = ".p2alignl 6, 0xbf800000"
                for _ in range(self.lal): a.raw("    s_nop 0")
            a(f"{LOOP}:")
            body()
            assert lg.q == q_end, (lg.q, q_end)
            a(f"s_branch {LOOP}")
            a.hist = []
            a(f"{LAST}:")
            def sec(k, first=False):
                if self.dry:
                    if not first: a(f"s_cmp_lg_u32 s64, 0\ns_cbranch_scc1 {L('dryret')}")
                    if k < 4: a(f"{L('sec%d' % k)}:")
            sec(0, True)
            lg.q = list(qmid)
            st = []
            for p in range(3):
                st.append(ds(f"ds_read2_b64 {vr(MM+4*p,4)}, v{cMM} offset0:{32*p} offset1:{32*p+16}", "st"))
            for p in range(3):
                st.append(ds(f"ds_read2_b32 {vr(RSQ+2*p,2)}, v{cRSQ} offset0:{32*p} offset1:{32*p+16}", "rsq"))
            for t in range(6):
                st.append(ds(f"ds_read_b32 v{RK+2*t}, v{cRK0} offset:{64*t}", "st"))
                st.append(ds(f"ds_read_b32 v{RK+2*t+1}, v{cRK1} offset:{64*t}", "st"))
            fl = {(0, 0): [after("flag", f"v_cmp_ne_u32 vcc, 0, v{vF}")], (0, 1): ["s_cmp_eq_u64 vcc, 0"], BAR: [f"s_cbranch_scc1 {L('sp2')}\n{L('ok2')}:"]}
            slots = [(1, 2), (1, 2), (1, 3), (1, 3), (1, 4), (1, 4), (1, 5), (1, 5), (3, 1), (3, 1), (3, 2), (3, 2), (3, 3), (3, 3), (3, 4), (3, 4), (4, 0), (4, 1)]
            for f, sl in zip(st, slots): fl.setdefault(sl, []).append(f)
            for c in range(4): fl[(2, c)] = [ds(f"ds_write_b128 v{cCSW}, {vr(acc(0,c),4)} offset:{64*c}", "csw")]
            for e in range(2): fl[(2, 4 + e)] = [ds(f"ds_write_b32 v{cCVW}, v{acc(0,4+e)} offset:{256+64*e}", "csw")]
            fl[(3, 0)] = [ds(f"ds_write_b32 v{cXFW}, v{cONE} offset:{O_XF}", "csw")]
            fl[(3, 5)] = [ds(f"ds_read_b32 v{vF}, v{cXFR} offset:{O_XF}", "flag")]
            fl[(4, 2)] = [after("flag", f"v_cmp_eq_u32 vcc, 1, v{vF}")]
            fl[(4, 3)] = [f"v_mul_f32 v{RSQ}, s61, v{RSQ}\ns_cmp_eq_u64 vcc, 0"]
            fl[(4, 4)] = [f"s_cbranch_scc1 {L('sp3')}\n{L('ok3')}:"]
            for n, c in enumerate((2, 3, 0, 1)):
                fl[[(4, 5), (5, 0), (5, 1), (5, 2)][n]] = [ds(f"ds_read_b128 {vr(csq(c),4)}, v{cCSR} offset:{64*c}", ("cs", c)), f"v_mul_f32 v{RSQ+1+n}, s61, v{RSQ+1+n}"]
            for e in range(2):
                fl[(5, 3 + e)] = [ds(f"ds_read2_b32 {vr(CSV+2*e,2)}, v{cCVR} offset0:{64+16*e} offset1:{64+16*e}", "csv")]
            fl[(5, 3)].append(f"v_mul_f32 v{RSQ+5}, s61, v{RSQ+5}")
            phase(1, fl, prefetch=False)
        self.stamp(3)
        if self.stamps: a("s_memtime s[98:99]\ns_waitcnt lgkmcnt(0)\ns_mov_b32 s95, s98")
        if self.stamps: lg.q = []
        for t in (5, 4, 3, 2, 1, 0):
            a(f"ds_read_b128 {vr(M4+4*t,4)}, v{cM4} offset:{64*t}"); lg.add(("m4", t))
        NEG2 = "neg_lo:[0,1,0] neg_hi:[0,1,0]"
        def norm(t, c):
            d = acc(t, c)
            out = []
            for j in range(2):
                if c < 4: out.append(f"v_pk_fma_f32 {vr(d+2*j,2)}, {vr(csq(c)+2*j,2)}, {vr(mm(t),2)}, {vr(d+2*j,2)} {NEG2}")
                else: out.append(f"v_pk_fma_f32 {vr(d+2*j,2)}, {vr(M4+4*t+2*j,2)}, {vr(CSV+2*(c-4),2)}, {vr(d+2*j,2)} {NEG2}")
            dst = acc(t, c & ~1) + (c & 1) * 2
            for j in range(2): out.append(f"v_cvt_pk_bf16_f32 v{dst+j}, v{d+2*j}, v{d+2*j+1}")
            return out
        def norm2(t, c):
            x, y = norm(t, c), norm(t, c + 1)
            return x[:2] + y[:2] + x[2:] + y[2:]
        qop = lambda t: acc(t, 0)
        kop = lambda t: acc(t, 2) if t >= 0 else KP
        vop = lambda t, e: (acc(t, 4) if t >= 0 else VPV) + 2 * e
        def smm(t):
            a(f"v_mfma_f32_16x16x32_bf16 {vr(acc(t,1),4)}, {vr(kop(t-1),4)}, {vr(qop(t),4)}, 0")
            a(f"v_mfma_f32_16x16x32_bf16 {vr(acc(t,3),4)}, {vr(kop(t),4)}, {vr(qop(t),4)}, 0")
        lg.wait("st", ("cs", 3))
        for t in (4, 5):
            for i in norm2(t, 2): a(i)
        lg.wait("csv", ("m4", 5))
        for i in norm2(5, 4): a(i)
        a(f"ds_write_b128 v{cXCW}, {vr(acc(5,2),4)}\nds_write_b128 v{cXCW}, {vr(acc(5,4),4)} offset:1024\nds_write_b32 v{cXFW}, v{cONE} offset:{O_XF+4}")
        lg.add("w"); lg.add("w"); lg.add("w")
        for i in norm2(5, 0): a(i)
        sec(1)
        for t in (3, 2, 1, 0):
            for i in norm2(t, 2): a(i)
            smm(t + 2)
            for i in norm2(t + 1, 0): a(i)
            if t == 1:
                a(f"ds_read_b32 v{vF}, v{cXFR} offset:{O_XF+4}"); lg.add("flag")
        lg.wait("flag")
        a(f"v_cmp_eq_u32 vcc, 1, v{vF}")
        x = norm2(0, 0)
        for i in x[:4]: a(i)
        a(f"s_cmp_eq_u64 vcc, 0\ns_cbranch_scc1 {L('sp4')}\n{L('ok4')}:")
        a(f"ds_read_b128 {vr(KP,4)}, v{cXCH}\nds_read_b128 {vr(VPV,4)}, v{cXCH} offset:1024"); lg.add("rx"); lg.add("rx")
        smm(1)
        for i in x[4:]: a(i)
        sec(2)
        vfill = []
        for t in (4, 3, 2, 1, 0): vfill += norm2(t, 4)
        def select(t):
            P, C, D = acc(t, 1), acc(t, 3), acc(t, 1)
            a(f"v_cndmask_b32 v{P}, v{P}, v{P+1}, s[50:51]\nv_cndmask_b32 v{P+2}, v{P+2}, v{P+3}, s[50:51]")
            a(f"v_cndmask_b32 v{C}, v{C}, v{C+1}, s[50:51]\nv_cndmask_b32 v{C+2}, v{C+2}, v{C+3}, s[50:51]")
            a(f"v_cndmask_b32 v{D}, v{P}, v{C}, s[52:53]\nv_cndmask_b32 v{D+1}, v{P+2}, v{C+2}, s[54:55]")
            a(f"v_pk_mul_f32 {vr(D,2)}, {vr(D,2)}, {vr(rk(t),2)}")
            if t == 1:
                a(f"v_cndmask_b32 v{D}, v{D}, v{cNEG}, s[56:57]\nv_cndmask_b32 v{D+1}, v{D+1}, v{cNEG}, s[58:59]")
            a(f"v_max_f32 v{D+2}, v{D}, v{D+1}")
        select(5); select(4)
        lg.wait("rx")
        smm(0)
        for t in (3, 2, 1, 0): select(t)
        order = [5, 4, 3, 2, 1, 0]
        def fillv(n):
            for _ in range(n):
                if vfill: a(vfill.pop(0))
        def allreduce(op, post):
            R = [acc(t, 1) + 2 for t in range(6)]
            X0 = acc(0, 1) + 3
            fillv(2)
            for p in (2, 1, 0): a(f"v_permlane32_swap_b32 v{R[2*p]}, v{R[2*p+1]}")
            for p in (2, 1, 0): a(f"{op} v{R[2*p]}, v{R[2*p]}, v{R[2*p+1]}")
            a(f"v_mov_b32 v{X0}, v{R[0]}")
            a(f"v_permlane16_swap_b32 v{R[2]}, v{R[4]}")
            fillv(1)
            a(f"v_permlane16_swap_b32 v{R[0]}, v{X0}")
            a(f"{op} v{R[2]}, v{R[2]}, v{R[4]}\n{op} v{R[0]}, v{R[0]}, v{X0}")
            if post:
                post(R[2]); post(R[0]); fillv(1)
            a(f"v_mov_b32 v{R[4]}, v{R[2]}\nv_mov_b32 v{R[1]}, v{R[0]}")
            fillv(1)
            a(f"v_permlane16_swap_b32 v{R[2]}, v{R[4]}")
            a(f"v_permlane32_swap_b32 v{R[0]}, v{R[1]}")
            a(f"v_mov_b32 v{R[3]}, v{R[2]}\nv_mov_b32 v{R[5]}, v{R[4]}")
            fillv(1)
            a(f"v_permlane32_swap_b32 v{R[2]}, v{R[3]}\nv_permlane32_swap_b32 v{R[4]}, v{R[5]}")
        allreduce("v_max_f32", None)
        for t in (0, 1, 2, 3, 4, 5):
            D = acc(t, 1)
            a(f"v_mul_f32 v{D+2}, v{D+2}, v{RSQ+t}\nv_fma_f32 v{D}, v{D}, v{RSQ+t}, -v{D+2}\nv_fma_f32 v{D+1}, v{D+1}, v{RSQ+t}, -v{D+2}")
        for t in order:
            D = acc(t, 1)
            a(f"v_exp_f32 v{D}, v{D}\nv_exp_f32 v{D+1}, v{D+1}")
        sec(3)
        for t in order:
            D = acc(t, 1)
            a(f"v_add_f32 v{D+2}, v{D}, v{D+1}")
        vfill = [f"v_pk_mul_f32 {vr(acc(t,1),2)}, {vr(acc(t,1),2)}, {vr(rk(t),2)}" for t in order] + vfill
        allreduce("v_add_f32", lambda r: a(f"v_rcp_f32 v{r}, v{r}"))
        fillv(99)
        M16 = "v_mfma_f32_16x16x16_bf16"
        def pv(t):
            P = acc(t, 0)
            for e in range(2):
                o = vr(acc(t, 3 + 2 * e), 4)
                a(f"{M16} {o}, {vr(vop(t-1,e),2)}, {vr(P,2)}, 0")
            for e in range(2):
                o = vr(acc(t, 3 + 2 * e), 4)
                a(f"{M16} {o}, {vr(vop(t,e),2)}, {vr(P+2,2)}, {o}")
        def pp(t):
            D, P = acc(t, 1), acc(t, 0)
            a(f"v_mul_f32 v{D}, v{D}, v{D+2}\nv_mul_f32 v{D+1}, v{D+1}, v{D+2}\nv_cvt_pk_bf16_f32 v{D}, v{D}, v{D+1}")
            for k in range(4): a(f"v_perm_b32 v{P+k}, v{D}, v{D}, v{cSEL+k}")
        def ost(t):
            d = acc(t, 1)
            for e in range(2):
                s = acc(t, 3 + 2 * e)
                a(f"v_cvt_pk_bf16_f32 v{d+2*e}, v{s}, v{s+1}\nv_cvt_pk_bf16_f32 v{d+2*e+1}, v{s+2}, v{s+3}")
            a(f"buffer_store_dwordx4 {vr(d,4)}, v{cOST}, s[20:23], {'s%d' % (65+t) if t else '0'} offen sc1")
        DONE = L("cdone")
        pp(1); pp(2); pv(1); pp(3); pv(2)
        sec(4)
        pp(4); pv(3); ost(1); pp(5); pv(4); ost(2); pp(0); pv(5); ost(3); pv(0); ost(4); ost(5)
        a(f"s_cmp_eq_u32 s41, 0\ns_cbranch_scc1 {DONE}")
        ost(0)
        a(f"{DONE}:")
        self.stamp(4)
        a("s_mov_b64 exec, 1")
        if self.early: a(f"ds_add_u32 v1, v{cONE} offset:{O_EPI}")
        a(f"s_waitcnt vmcnt(0)\nds_add_rtn_u32 v3, v1, v{cONE} offset:{O_ARR}\ns_waitcnt lgkmcnt(0)")
        a(f"v_readfirstlane_b32 s42, v3\ns_cmp_lg_u32 s42, 3\ns_cbranch_scc1 {L('nfl')}")
        a(f"buffer_store_dword v{cONE}, v33, s[20:23], 0 offen {self.stfl}\n{L('nfl')}:\ns_mov_b64 exec, -1\ns_setprio 0")
        self.stamp(5)

    def moe(self):
        a, L, name, nomoe = self.a, self.L, self.name, self.nomoe
        a(f"{L('moe')}:")
        GU, WD, ACC, XS = 128, 64, 32, 16
        vT, vG, vD = 1, 5, 9
        a("s_load_dwordx8 s[64:71], s[0:1], 32")
        a("s_mov_b32 s60, 0x3a800000")
        a(f"v_lshlrev_b32 v13, 2, v0\nv_add_u32 v13, {MISC}, v13\nv_mov_b32 v14, 0\nv_cmp_lt_u32 vcc, {O_XF//4}, v0\nds_write_b32 v13, v14 offset:{L_UPD+2048-MISC}\nds_write_b32 v13, v14 offset:{O_SEL}\nv_cndmask_b32 v15, 0, 4, vcc\nds_write_b32 v13, v15")
        a("s_and_b32 s33, s28, 1\ns_lshl_b32 s33, s33, 10\ns_lshr_b32 s36, s28, 1\ns_lshl_b32 s36, s36, 8\ns_add_u32 s33, s33, s36")
        a("s_sub_u32 s36, s29, 24\ns_lshl_b32 s36, s36, 5\ns_add_u32 s33, s33, s36\ns_lshl_b32 s36, s3, 2\ns_add_u32 s33, s33, s36")
        a("s_mul_i32 s30, s28, 7\ns_add_u32 s30, s30, s29\ns_sub_u32 s30, s30, 24\ns_cmp_eq_u32 s29, 31\ns_cselect_b32 s30, 0, s30")
        a("s_lshl_b32 s45, s3, 14")
        for u in range(4):
            w_tr_laneaddr(a, vT + u, 0, 13, 14, u, 2048)
            a(f"v_add_u32 v{vT+u}, s45, v{vT+u}")
        a("s_mov_b32 s36, 7168")
        w_dma_laneoff(a, vG, 0, 13, 14, 36, True)
        a(f"s_lshl_b32 s36, s30, 7\ns_mul_i32 s37, s3, {128*7168}\ns_add_u32 s36, s36, s37\nv_add_u32 v{vG}, s36, v{vG}")
        for q in range(1, 4): a(f"v_add_u32 v{vG+q}, {(0,4,16,20)[q]*7168 - 1024*q}, v{vG}")
        a("s_mov_b32 s36, 2048")
        w_dma_laneoff(a, vD, 0, 13, 14, 36, False)
        a(f"s_lshl_b32 s36, s30, 17\ns_lshl_b32 s37, s3, 8\ns_add_u32 s36, s36, s37\nv_add_u32 v{vD}, s36, v{vD}")
        for q in range(1, 4): a(f"v_add_u32 v{vD+q}, {(0,16,8,24)[q]*2048 - 1024*q}, v{vD}")
        a("s_waitcnt lgkmcnt(0)")
        vm = LQ(a, "vmcnt", 63)
        srd(a, 76, 4, 0x400000); srd(a, 80, 64, 0x800); srd(a, 20, 74, WS_SIZE)
        if not self.zg:
            a(f"s_cmp_lg_u32 s2, {TOPWG}\ns_cbranch_scc1 {L('nz')}")
            if self.zf:
                srd(a, 24, 72, 0x100)
                a(f"s_lshl_b32 s36, s3, 10\ns_add_u32 s36, s36, {SFLAG_OFF:#x}\nv_lshlrev_b32 v13, 4, v0\nv_mov_b64 v[144:145], 0\nv_mov_b64 v[146:147], 0\nbuffer_store_dwordx4 v[144:147], v13, s[20:23], s36 offen sc1")
                a(f"v_mov_b32 v14, 1\ns_waitcnt vmcnt(0)\ns_barrier\ns_cmp_lg_u32 s3, 0\ns_cbranch_scc1 {L('nz1')}\ns_mov_b64 exec, 1\nbuffer_store_dword v14, v145, s[24:27], 0 offen sc1\ns_mov_b64 exec, -1\n{L('nz1')}:")
            a(f"s_lshl_b32 s36, s3, 12\ns_add_u32 s36, s36, {OFLAG_OFF:#x}\nv_lshlrev_b32 v13, 7, v0\nv_mov_b32 v15, 0\ns_mov_b32 exec_hi, 0\nbuffer_store_dword v15, v13, s[20:23], s36 offen sc1\ns_mov_b32 exec_hi, -1")
            if self.fw:
                srd(a, 24, 72, 0x100)
                a("v_lshlrev_b32 v13, 2, v0\n" + ("buffer_load_dword v144, v13, s[24:27], 0 offen sc1" if self.fw == 1 else "buffer_store_dword v14, v13, s[24:27], 0 offen sc1"))
            a(f"{L('nz')}:")
        if self.ew:
            n = self.n0
            srd(a, 8, 6, 0x600000)
            a(f"s_sub_u32 s36, s29, 24\ns_lshl_b32 s36, s36, 3\ns_add_u32 s36, s36, s3\ns_lshl_b32 s36, s36, 1\ns_and_b32 s37, s28, 1\ns_add_u32 s36, s36, s37\ns_mul_i32 s36, s36, {n*2048}")
            a("s_lshr_b32 s37, s28, 1\ns_lshl_b32 s37, s37, 9\ns_add_u32 s36, s36, s37\ns_add_u32 s36, s36, 393216")
            a(f"v_lshrrev_b32 v13, 2, v0\nv_lshlrev_b32 v13, 11, v13\nv_and_b32 v14, 3, v0\nv_lshl_add_u32 v13, v14, 7, v13\ns_mov_b64 exec, {(1 << (4*n)) - 1:#x}" if 4*n <= 31 else
              f"v_lshrrev_b32 v13, 2, v0\nv_lshlrev_b32 v13, 11, v13\nv_and_b32 v14, 3, v0\nv_lshl_add_u32 v13, v14, 7, v13\ns_mov_b32 exec_hi, {(1 << (4*n-32)) - 1:#x}")
            a("buffer_load_dword v15, v13, s[8:11], s36 offen\ns_mov_b64 exec, -1")
        stats_loads(a, vm, 76, 80, 33, self.rfl)
        srd(a, 8, 66, 1024 * 7168); srd(a, 12, 68, 1024 * 7168); srd(a, 16, 70, 3584 * 2048); srd(a, 24, 72, 0x100)
        if self.swp:
            a(f"s_bitcmp1_b32 {'s3' if self.swp == 1 else 's30'}, 0\ns_cselect_b32 s8, s68, s66\ns_cselect_b32 s9, s69, s67\ns_cselect_b32 s12, s66, s68\ns_cselect_b32 s13, s67, s69\ns_cselect_b32 s61, 0x1000, 0")
        if self.zf: a("v_mov_b32 v145, 0\nv_mov_b32 v144, 0")
        a("s_cmp_eq_u32 s29, 31\ns_cselect_b32 s18, 0, s18")
        if self.zf and self.zl and not self.zg:
            a(f"s_cmp_lg_u32 s2, {TOPWG}\ns_cbranch_scc1 {L('nz2')}\ns_waitcnt vmcnt(11)\ns_barrier\ns_cmp_lg_u32 s3, 0\ns_cbranch_scc1 {L('nz2')}")
            a(f"v_mov_b32 v146, 1\ns_mov_b64 exec, 1\nbuffer_store_dword v146, v145, s[24:27], 0 offen sc1\ns_mov_b64 exec, -1\n{L('nz2')}:")
        if self.dl: a("s_cselect_b32 s10, 0, s10")
        SEQ = [0, 1, 2, 3] if self.dl else [4, 5, 0, 1, 2, 3]
        def issue(k):
            c, buf = SEQ[k], (k & 1) * 8192
            for p in range(2):
                a(f"s_add_u32 m0, s45, {buf+p*4096}")
                if c < 4:
                    a(f"s_mov_b32 s46, {((c&1)*64+p*32)*7168}")
                    for q in range(4):
                        a(f"buffer_load_dwordx4 v{vG+q}, {sr(8+4*(c>>1),4)}, s46 offen offset:{1024*q} {self.moent} lds"); vm.add(("c", k))
                else:
                    a(f"s_mov_b32 s46, {p*32*2048+(c-4)*128}")
                    for q in range(4):
                        a(f"buffer_load_dwordx4 v{vD+q}, s[16:19], s46 offen offset:{1024*q} {self.moent} lds"); vm.add(("c", k))
        gu = lambda mat, s, ft: GU + ((mat * 4 + s) * 4 + ft) * 4
        wd = lambda s2, ct: WD + (s2 * 8 + ct) * 4
        def proc(k):
            vm.wait(("c", k))
            c, buf = SEQ[k], (k & 1) * 8192
            n = 0
            for h in range(2):
                for u in range(4):
                    r = gu(c >> 1, (c & 1) * 2 + h, u) if c < 4 else wd(h, (c - 4) * 4 + u)
                    for i2 in range(2):
                        a(f"ds_read_b64_tr_b16 {vr(r+2*i2,2)}, v{vT+u} offset:{buf+h*4096+i2*1024}")
                        n += 1
                        if n == 12: a("s_waitcnt lgkmcnt(8)")
            a("s_waitcnt lgkmcnt(0)")
        def wchunk(vt, vd, srdb=80):
            srd(a, srdb, 6, 0 if self.notouch & 1 else 0x600000)
            a("s_lshl_b32 s37, s36, 1\ns_and_b32 s38, s28, 1\ns_add_u32 s37, s37, s38\ns_lshl_b32 s37, s37, 15\ns_lshr_b32 s38, s28, 1\ns_lshl_b32 s38, s38, 9\ns_add_u32 s37, s37, s38\ns_add_u32 s37, s37, 393216")
            a(f"v_lshrrev_b32 v{vt}, 2, v0\nv_lshlrev_b32 v{vt}, 11, v{vt}\nv_and_b32 v14, 3, v0\nv_lshl_add_u32 v{vt}, v14, 7, v{vt}\nbuffer_load_dword v{vd}, v{vt}, {sr(srdb,4)}, s37 offen")
        def spare_chunk(base, lbl):
            if self.sp3:
                a(f"s_cmp_eq_u32 s28, {TOPWG & 7}\ns_cselect_b32 s36, 30, 31\ns_cmp_lg_u32 s29, s36\ns_cbranch_scc1 {lbl}\ns_add_u32 s36, s3, {base}")
            else:
                a(f"s_cmp_lg_u32 s29, 31\ns_cbranch_scc1 {lbl}\ns_add_u32 s36, s3, {base}")
            wchunk(13, 200)
            a(f"{lbl}:")
        ZL = "buffer_load_dword v144, v145, s[24:27], 0 offen sc1"
        def first():
            issue(0)
            if not self.sp1 and not self.sp2: spare_chunk(self.c1, L("sc0"))
        (stats_fast if self.fst else stats_compute)(a, vm, 33, None if self.nf else first)
        if self.zf: a(f"s_cmp_lg_u32 s3, 0\ns_cbranch_scc1 {L('nzl')}\n{ZL}\n{L('nzl')}:")
        a(f"v_lshlrev_b32 v16, 2, v23\nv_lshlrev_b32 v17, 3, v23\ns_mov_b32 s46, {MR_OFF:#x}")
        a("s_mov_b32 exec_lo, 0x10001\ns_mov_b32 exec_hi, 0x10001")
        a("buffer_store_dword v22, v16, s[20:23], 0 offen sc1"); vm.add("st")
        a("buffer_store_dwordx2 v[20:21], v17, s[20:23], s46 offen sc1"); vm.add("st")
        a("s_mov_b64 exec, -1")
        if self.nf == 1: issue(0)
        if self.nf == 3:
            a(f"s_cmp_lt_u32 s3, 4\ns_cbranch_scc1 {L('nf1')}")
            q = list(vm.q); issue(0); a(f"s_waitcnt vmcnt(8)\ns_branch {L('nf2')}\n{L('nf1')}:\ns_waitcnt vmcnt(0)\n{L('nf2')}:"); vm.q = []
        if not self.nf: issue(1)
        if self.sp1 and not self.sp2 and not self.nf: spare_chunk(self.c1, L("sc0"))
        if not self.nf: a(f"s_cmp_lg_u32 s29, 31\ns_cbranch_scc1 {L('sc1')}\ns_waitcnt vmcnt({1 if self.sp1 and not self.sp2 else 0})\ns_cmp_lg_u32 s2, {TOPWG}\ns_cbranch_scc1 {L('sc1')}\ns_waitcnt vmcnt(0)\n{L('sc1')}:")
        if self.sgate:
            a(f"s_cmp_lg_u32 s29, 31\ns_cbranch_scc1 {L('nsg')}\ns_add_u32 s36, s28, 3\ns_and_b32 s36, s36, 7\ns_cmp_eq_u32 s36, 7\ns_cbranch_scc1 {L('nsg')}")
            a(f"s_mul_i32 s37, s28, 7\ns_add_u32 s36, s36, s37\ns_lshl_b32 s36, s36, 7\ns_mul_i32 s37, s3, {128*7168}\ns_add_u32 s36, s36, s37\ns_add_u32 s37, s36, {64*7168}\ns_mov_b32 s38, 7168\nv_mul_lo_u32 v16, v0, s38")
            a(f"buffer_load_dword v40, v16, s[8:11], s36 offen\nbuffer_load_dword v41, v16, s[8:11], s37 offen\n{L('nsg')}:")
        a("s_sub_u32 s47, s2, 192\ns_lshl_b32 s47, s47, 1\nv_mov_b32 v13, s47\nv_mov_b32 v15, 1")
        if not self.nf: proc(0)
        if self.i2e:
            a(f"s_cmp_eq_u32 s29, 31\ns_cbranch_scc1 {L('ni2')}\ns_cmp_lt_u32 s3, {self.i2e}\ns_cbranch_scc1 {L('ni2')}")
            q = list(vm.q); issue(2); a("s_waitcnt vmcnt(16)"); vm.q = q
            a(f"s_branch {L('ni3')}\n{L('ni2')}:")
        vm.wait("st")
        if self.i2e: a(f"{L('ni3')}:")
        a("s_barrier")
        a(f"s_cmp_lg_u32 s3, 0\ns_cbranch_scc1 {L('na')}")
        if self.zf:
            self.gpoll(ZL, 144, "v_cmp_ne_u32 vcc, 0, v144", 47, 8, preloaded=True)
            a(f"v_lshlrev_b32 v13, 6, v13\nv_add_u32 v13, {SFLAG_OFF:#x}, v13\ns_mov_b64 exec, 1\nbuffer_store_dword v15, v13, s[20:23], 0 offen sc1\ns_mov_b64 exec, -1\n{L('na')}:")
        else:
            a(f"s_mov_b64 exec, 1\nbuffer_store_short v15, v13, s[24:27], 0 offen {self.stfl}\ns_mov_b64 exec, -1\n{L('na')}:")
        if self.fb2: a("s_barrier")
        self.stamp(8)
        if self.nf:
            if self.nf == 3: a(f"s_cmp_ge_u32 s3, 4\ns_cbranch_scc1 {L('nf3')}")
            if self.nf >= 2: issue(0)
            if self.nf == 3: a(f"{L('nf3')}:")
            issue(1)
            spare_chunk(self.c1, L("sc0"))
        if self.sp2:
            a(f"s_cmp_eq_u32 s2, {TOPWG}\ns_cbranch_scc1 {L('sq0')}\ns_cmp_eq_u32 s2, {TOPWG-8}\ns_cbranch_scc1 {L('sq1')}\ns_cmp_lg_u32 s29, 31\ns_cbranch_scc1 {L('sq0')}\n{L('sq1')}:\ns_add_u32 s36, s3, {self.c1}")
            wchunk(13, 15)
            a(f"{L('sq0')}:")
        if self.x5:
            a(f"s_cmp_lg_u32 s28, {TOPWG & 7}\ns_cbranch_scc1 {L('nuc')}\ns_cmp_ge_u32 s29, 30\ns_cbranch_scc1 {L('nuc')}\ns_sub_u32 s36, 7, s3\ns_mul_i32 s36, s36, 6\ns_add_u32 s36, s36, s29\ns_add_u32 s36, s36, {self.c1+32-24}\ns_cmp_ge_u32 s36, {self.c1+46}\ns_cbranch_scc1 {L('nuc')}")
            wchunk(13, 15)
        elif self.x4:
            a(f"s_cmp_lg_u32 s2, {TOPWG-8}\ns_cbranch_scc1 {L('nuc')}\ns_cmp_eq_u32 s3, 0\ns_cbranch_scc1 {L('nuc')}\ns_add_u32 s36, s3, {self.c1+31}")
            wchunk(13, 15)
            a(f"s_add_u32 s36, s3, {self.c1+38}")
            wchunk(13, 15)
        elif not self.bigt:
            a(f"s_cmp_eq_u32 s29, 31\ns_cbranch_scc1 {L('nuc')}")
            a(f"s_sub_u32 s36, s29, 24\ns_add_u32 s37, s28, 3\ns_and_b32 s37, s37, 7\ns_cmp_eq_u32 s36, s37\ns_cbranch_scc1 {L('nuc')}\ns_cmp_gt_u32 s36, s37\ns_subb_u32 s36, s36, 0")
            a(f"s_cmp_eq_u32 s37, 7\ns_cselect_b32 s37, 7, 6\ns_cselect_b32 s38, 78, 64\ns_sub_u32 s46, 7, s3\ns_mul_i32 s37, s37, s46\ns_add_u32 s36, s36, s37\ns_add_u32 s36, s36, {64 if self.tb else 40}\ns_cmp_ge_u32 s36, s38\ns_cbranch_scc1 {L('nuc')}")
            wchunk(13, 15)
        a(f"{L('nuc')}:\nv_and_b32 v13, 7, v0\nv_lshlrev_b32 v13, 2, v13")
        a(f"s_cmp_eq_u32 s29, 31\ns_cbranch_scc1 {L('spare')}")
        if self.i2e: a(f"s_cmp_ge_u32 s3, {self.i2e}\ns_cbranch_scc1 {L('ni4')}")
        if self.nf: proc(0)
        issue(2)
        if self.i2e: a(f"{L('ni4')}:")
        if not self.dl:
            proc(1); issue(3)
            proc(2); issue(4)
            proc(3)
        SELLOAD = f"buffer_load_dword v24, v13, s[24:27], 0 offen offset:128 {self.pollfl}"
        if self.mp == 0:
            a(SELLOAD); vm.add("poll")
            issue(5)
            proc(4)
            vm.wait("poll")
            self.gpoll(SELLOAD, 24, "v_cmp_ne_u32 vcc, 0, v24", 47, self.msl, preloaded=True)
        elif self.mp == 3:
            SD = f"s_mov_b32 m0, {MISC+O_SEL}\ns_mov_b32 s46, 128\nbuffer_load_dword v13, s[24:27], s46 offen {self.pollfl} lds"
            a(f"v_add_u32 v15, {MISC+O_SEL}, v13\ns_cmp_lg_u32 s3, 0\ns_cbranch_scc1 {L('np1')}\n{SD}\n{L('np1')}:")
            if self.dl: proc(1); issue(3); a(f"v_add_u32 v15, {MISC+O_SEL}, v13")
            else: issue(5); proc(4)
            a(f"s_mov_b32 s47, 0\n{L('sl1')}:\nds_read_b32 v24, v15\ns_waitcnt lgkmcnt(0)\nv_cmp_ne_u32 vcc, 0, v24\ns_cmp_eq_u64 vcc, -1\ns_cbranch_scc1 {L('sl2')}")
            a(f"s_add_u32 s47, s47, 1\ns_cmp_lt_u32 s47, {POLL_MAX:#x}\ns_cbranch_scc0 {L('sl2')}\ns_sleep {self.msl}\ns_cmp_lg_u32 s3, 0\ns_cbranch_scc1 {L('sl1')}")
            a(f"s_waitcnt vmcnt(40)\n{SD}\ns_branch {L('sl1')}\n{L('sl2')}:")
        elif self.mp == 1:
            issue(5)
            proc(4)
            self.gpoll(SELLOAD, 24, "v_cmp_ne_u32 vcc, 0, v24", 47, self.msl)
        else:
            a(f"v_mov_b32 v24, 0\ns_cmp_lt_u32 s3, 4\ns_cbranch_scc1 {L('np1')}\n{SELLOAD}\n{L('np1')}:")
            issue(5)
            proc(4)
            self.gpoll(SELLOAD, 24, "v_cmp_ne_u32 vcc, 0, v24", 47, self.msl, preloaded=True)
        a(f"v_or_b32 v12, 0x800, v24\nv_add_u32 v15, {MISC+O_SEL}, v13")
        a("v_and_b32 v25, 0x7ff, v24\nv_sub_u32 v25, 0x7ff, v25")
        a("v_lshrrev_b32 v13, 4, v0\nv_lshlrev_b32 v13, 4, v13\nv_lshl_add_u32 v13, v25, 11, v13\nv_bfe_u32 v14, v0, 3, 1\nv_lshl_add_u32 v13, v14, 7, v13\ns_lshl_b32 s36, s3, 8")
        a(f"v_lshlrev_b32 v14, 3, v25\ns_mov_b32 s46, {MR_OFF:#x}")
        a(f"buffer_load_dwordx2 v[{vG+1}:{vG+2}], v14, s[20:23], s46 offen sc1"); vm.add("mr")
        for s in range(2):
            a(f"buffer_load_dwordx4 {vr(XS+4*s,4)}, v13, s[76:79], s36 offen offset:{64*s}"); vm.add(("xs", s))
        self.stamp(9)
        if self.dl:
            def dld(k0, k1):
                for k in range(k0, k1):
                    for jo in range(2): a(f"buffer_load_dwordx4 {vr(WD+8*k+4*jo,4)}, v11, s[16:19], s58 offen offset:{2048*jo} {self.moent}")
                    a(f"s_add_u32 s58, s58, {0x1000 if k % 2 == 0 else 0x7000}")
            proc(2); proc(3)
        else: proc(5)
        a(f"v_lshl_add_u32 v13, v0, 4, s45")
        a("s_and_b32 s36, s3, 3\ns_lshl_b32 s37, s36, 10\nv_lshl_add_u32 v14, v0, 4, s37")
        a(f"s_lshl_b32 s37, s36, 9\ns_add_u32 s37, s37, {M_H}\nv_lshl_add_u32 v8, v0, 3, s37")
        a(f"v_and_b32 v9, 0x37, v0\nv_lshlrev_b32 v9, 3, v9\nv_add_u32 v9, {M_H}, v9")
        a("v_and_b32 v10, 7, v0\nv_lshlrev_b32 v10, 12, v10\nv_bfe_u32 v11, v0, 3, 1\nv_lshl_add_u32 v10, v11, " + ("5, v10\nv_lshrrev_b32 v11, 5, v0\nv_lshl_add_u32 v10, v11, 8, v10\nv_bfe_u32 v11, v0, 4, 1" if self.dl else "6, v10\nv_lshrrev_b32 v11, 4, v0") + "\nv_lshl_add_u32 v10, v11, 4, v10")
        a(f"s_lshl_b32 s36, s30, 15\ns_lshl_b32 s37, s3, 9\ns_add_u32 s36, s36, s37\ns_add_u32 s36, s36, {PART_OFF:#x}\nv_add_u32 v10, s36, v10")
        a("s_mov_b32 s50, 0xff00ff00\ns_mov_b32 s51, 0xff00ff00")
        vm.wait(("xs", 0))
        a("v_mov_b32 v4, v7\nv_mov_b32 v5, v7\nv_mov_b32 v7, v6")
        TP = XS + 8
        def nrm(s):
            X = XS + 4 * s
            for j in range(4): a(f"v_lshlrev_b32 v{TP+2*j}, 16, v{X+j}\nv_and_b32 v{TP+2*j+1}, s39, v{X+j}")
            for j in range(4): a(f"v_pk_add_f32 {vr(TP+2*j,2)}, {vr(TP+2*j,2)}, v[6:7] neg_lo:[0,1] neg_hi:[0,1]")
            for j in range(4): a(f"v_cvt_pk_bf16_f32 v{X+j}, v{TP+2*j}, v{TP+2*j+1}")
            for j in range(4): a(f"v_lshlrev_b32 v{TP+2*j}, 16, v{X+j}\nv_and_b32 v{TP+2*j+1}, s39, v{X+j}")
            for j in range(4): a(f"v_pk_mul_f32 {vr(TP+2*j,2)}, {vr(TP+2*j,2)}, v[4:5]")
            for j in range(4): a(f"v_cvt_pk_bf16_f32 v{X+j}, v{TP+2*j}, v{TP+2*j+1}")
        def gumm(s):
            for mat in range(2):
                for ft in range(4):
                    d = vr(ACC + (mat * 4 + ft) * 4, 4)
                    a(f"v_mfma_f32_16x16x32_bf16 {d}, {vr(gu(mat,s,ft),4)}, {vr(XS+4*s,4)}, {d if s else '0'}")
        nrm(0); gumm(0)
        vm.wait(("xs", 1))
        if self.dl:
            a("v_lshrrev_b32 v11, 4, v0\nv_lshlrev_b32 v11, 13, v11\nv_and_b32 v1, 15, v0\nv_lshl_add_u32 v11, v1, 4, v11\ns_lshl_b32 s58, s30, 17\ns_lshl_b32 s37, s3, 8\ns_add_u32 s58, s58, s37")
            KH = self.dl - 1
            dld(0, KH)
            a(f"s_cmp_ge_u32 s3, 4\ns_cbranch_scc1 {L('dl1')}")
            dld(KH, 8)
            a(f"{L('dl1')}:")
        nrm(1)
        for r in range(8): a(f"v_mov_b32_dpp v{XS+8+r}, v{XS+r} row_ror:8 {DPP}")
        gumm(1); gumm(2); gumm(3)
        a("ds_write_b32 v15, v12")
        if self.swp:
            a("v_add_u32 v11, s61, v13\nv_xor_b32 v13, 0x1000, v11")
            for k in range(8): a(f"ds_write_b128 v{11 if k < 4 else 13}, {vr(ACC+4*k,4)} offset:{1024*(k&3)}")
        else:
            for k in range(8): a(f"ds_write_b128 v13, {vr(ACC+4*k,4)} offset:{1024*k}")
        a("s_waitcnt lgkmcnt(0)\ns_barrier")
        self.stamp(6)
        NR = L("nored")
        a(f"s_lshl_b32 s56, s30, 7\ns_add_u32 s56, s56, {PFLAG_OFF:#x}\ns_mov_b32 s59, 0")
        a(f"s_cmp_ge_u32 s3, 4\ns_cbranch_scc1 {NR}")
        R = GU
        a("v_add_u32 v15, 0x10000, v14")
        for mat in range(2):
            for w in range(8):
                a(f"ds_read_b128 {vr(R+(mat*8+w)*4,4)}, v{14+(w>>2)} offset:{(w&3)*16384+mat*4096}")
            if mat == 0: a("s_waitcnt lgkmcnt(4)")
        for mat in range(2):
            a(f"s_waitcnt lgkmcnt({8 if mat == 0 else 0})")
            b = R + mat * 32
            for st in (16, 8, 4):
                for k in range(0, st, 2):
                    a(f"v_pk_add_f32 {vr(b+k,2)}, {vr(b+k,2)}, {vr(b+st+k,2)}")
        for mat in range(2):
            b = R + mat * 32
            for j in range(2): a(f"v_cvt_pk_bf16_f32 v{b+8+j}, v{b+2*j}, v{b+2*j+1}")
            for j in range(2): a(f"v_lshlrev_b32 v{b+2*j}, 16, v{b+8+j}\nv_and_b32 v{b+2*j+1}, s39, v{b+8+j}")
        g, u = R, R + 32
        for r in range(4): a(f"v_mul_f32 v{g+4+r}, 0xbfb8aa3b, v{g+r}")
        for r in range(4): a(f"v_exp_f32 v{g+4+r}, v{g+4+r}")
        for r in range(4): a(f"v_add_f32 v{g+4+r}, 1.0, v{g+4+r}")
        for r in range(4): a(f"v_rcp_f32 v{g+4+r}, v{g+4+r}")
        for r in range(4): a(f"v_mul_f32 v{g+r}, v{g+r}, v{g+4+r}")
        for j in range(2): a(f"v_cvt_pk_bf16_f32 v{g+8+j}, v{g+2*j}, v{g+2*j+1}")
        for j in range(2): a(f"v_lshlrev_b32 v{g+2*j}, 16, v{g+8+j}\nv_and_b32 v{g+2*j+1}, s39, v{g+8+j}")
        for j in range(2): a(f"v_pk_mul_f32 {vr(g+2*j,2)}, {vr(g+2*j,2)}, {vr(u+2*j,2)}")
        for j in range(2): a(f"v_cvt_pk_bf16_f32 v{g+8+j}, v{g+2*j}, v{g+2*j+1}")
        a(f"ds_write_b64 v8, {vr(g+8,2)}\ns_waitcnt lgkmcnt(0)")
        self.stamp(2)
        a(f"s_branch {L('hb')}\n{NR}:\ns_sub_u32 s3, s3, 4\ns_mov_b32 s59, 1")
        if self.dl: dld(KH, 8)
        self.p2decode()
        self.p2a(False)
        self.woaddr()
        if self.wfirst:
            a("s_barrier")
            self.wopart(48, 3)
            if self.wfirst > 1: self.wopart(16, 2)
            if self.dl: a(f"s_waitcnt vmcnt({20 if self.wfirst > 1 else 12})")
            a(f"s_branch {L('hb2')}")
        a(f"{L('hb')}:\ns_barrier\n" + ("s_waitcnt vmcnt(0)\n" if self.dl else "") + f"{L('hb2')}:")
        self.stamp(3)
        for ft in range(4): a(f"ds_read_b64 {vr(XS+2*ft,2)}, v9 offset:{512*ft}")
        if self.dl:
            a("s_mov_b32 s52, 0x05040100\ns_mov_b32 s53, 0x07060302")
            wd = lambda s2, ct: GU + (s2 * 8 + ct) * 4
            for s2 in range(2):
                for c in range(8):
                    for q in range(4): a(f"v_perm_b32 v{wd(s2,c)+q}, v{WD+32*s2+8*q+4+(c>>1)}, v{WD+32*s2+8*q+(c>>1)}, s{52+(c&1)}")
        a("s_waitcnt lgkmcnt(0)")
        for s2 in range(2):
            for ct in range(8):
                d = vr(ACC + ct * 4, 4)
                a(f"v_mfma_f32_16x16x32_bf16 {d}, {vr(wd(s2,ct),4)}, {vr(XS+4*s2,4)}, {d if s2 else '0'}")
        for p in range(4):
            d = ACC + 8 * p
            for r in range(4): a(f"v_cndmask_b32 v{d+r}, v{d+r}, v{d+4+r}, s[50:51]")
            a(f"buffer_store_dwordx4 {vr(d,4)}, v10, s[20:23], 0 offen offset:{(64 if self.dl else 128)*p} sc1")
        a(f"v_mov_b32 v1, {MISC}\ns_cmp_lg_u32 s59, 0\ns_cbranch_scc1 {L('p2d')}")
        self.stamp(4)
        a(f"{L('mlo')}:\nv_mov_b32 v2, s56\nv_mov_b32 v3, 1\ns_waitcnt vmcnt(0)")
        self.stamp(5)
        a("s_barrier")
        self.stamp(7)
        a(f"s_cmp_lg_u32 s3, 0\ns_cbranch_scc1 {L('help2')}\ns_mov_b64 exec, 1\nbuffer_store_dword v3, v2, s[20:23], 0 offen {self.stfl}\ns_mov_b64 exec, -1\ns_branch {L('help2')}")
        a.hist = []
        a(f"{L('spare')}:")
        a(f"v_add_u32 v29, {MISC+O_SEL}, v13\nv_mov_b32 v28, v13")
        a(f"s_cmp_eq_u32 s2, {TOPWG}\ns_cbranch_scc1 {L('top8')}")
        a(f"s_cmp_lg_u32 s3, 0\ns_cbranch_scc1 {L('sdone')}")
        self.gpoll(SELLOAD, 24, "v_cmp_ne_u32 vcc, 0, v24", 47, 32)
        a(f"s_branch {L('swr')}")
        a(f"{L('top8')}:")
        a("v_and_b32 v13, 31, v0\nv_lshlrev_b32 v13, 2, v13\ns_mov_b32 s48, 0x10001")
        a(f"s_lshl_b32 s36, s3, 10\nv_lshl_add_u32 v14, v0, 4, s36")
        a(f"s_lshl_b32 s36, s3, 5\nv_add_u32 v26, s36, v28\nv_add_u32 v26, {M_CAND}, v26")
        a(f"v_lshlrev_b32 v27, 2, v0\nv_add_u32 v27, {M_CAND}, v27")
        a(f"v_mov_b32 v30, 0\nds_write_b32 v27, v30 offset:1024\nds_write_b32 v27, v30 offset:1536")
        a(f"v_lshrrev_b32 v30, 4, v0\ns_lshl_b32 s36, s3, 2\nv_add_u32 v30, s36, v30\nv_lshlrev_b32 v30, 2, v30\nv_add_u32 v30, {M_GM}, v30")
        a(f"v_add_u32 v31, {M_GM}, v13\nv_lshrrev_b32 v32, 5, v0\nv_lshlrev_b32 v32, 6, v32\nv_add_u32 v32, {M_GM}, v32\nv_mov_b32 v33, {M_C2}\nv_mov_b32 v34, 1\ns_waitcnt lgkmcnt(0)")
        a(f"s_cmp_lg_u32 s3, 0\ns_cbranch_scc1 {L('spd')}")
        if self.zf:
            a(f"v_lshlrev_b32 v35, 7, v0\nv_add_u32 v35, {SFLAG_OFF:#x}, v35")
            self.gpoll(self.pl(15, 35, "s[20:23]"), 15, "v_cmp_ne_u32 vcc, 0, v15", 47, 4, diag=True)
        else:
            self.gpoll(self.pl(15, 13, "s[24:27]"), 15, "v_cmp_eq_u32 vcc, s48, v15", 47, 8, diag=True)
        a(f"{L('spd')}:\ns_barrier")
        self.stamp(9)
        a("buffer_load_dwordx4 v[16:19], v14, s[20:23], 0 offen sc1\ns_mov_b32 s48, 0\ns_waitcnt vmcnt(0)")
        LV, RD, TD = L("lv"), L("rd"), L("td")
        def rank16(own, base, cnt):
            for b in range(4):
                for k in range(4): a(f"v_cmp_gt_u32 s[{52+2*k}:{53+2*k}], v{base+4*b+k}, v{own}")
                for k in range(4): a(f"v_addc_co_u32 v{cnt}, vcc, 0, v{cnt}, s[{52+2*k}:{53+2*k}]")
        a("v_max3_u32 v20, v16, v17, v18\nv_max_u32 v20, v20, v19")
        for pat in ("quad_perm:[1,0,3,2]", "quad_perm:[2,3,0,1]", "row_half_mirror", "row_mirror"):
            a(f"v_max_u32_dpp v20, v20, v20 {pat} {DPP}")
        a("ds_write_b32 v30, v20\nv_mov_b32 v21, 0\ns_waitcnt lgkmcnt(0)\ns_barrier")
        a("ds_read_b32 v20, v31")
        for b in range(4): a(f"ds_read_b128 {vr(40+4*b,4)}, v32 offset:{16*b}")
        a("s_waitcnt lgkmcnt(0)")
        rank16(20, 40, 21)
        a("v_mov_b32 v22, v21\nv_permlane32_swap_b32 v21, v22\nv_add_u32 v21, v21, v22\nv_cmp_eq_u32 vcc, 7, v21\ns_ff1_i32_b64 s46, vcc\nv_readlane_b32 s46, v20, s46")
        for k in range(4): a(f"v_cmp_le_u32 s[{52+2*k}:{53+2*k}], s46, v{16+k}")
        for k in range(4): a(f"s_mov_b64 exec, s[{52+2*k}:{53+2*k}]\nds_add_rtn_u32 v{20+k}, v33, v34 offset:512")
        a("s_mov_b64 exec, -1\ns_waitcnt lgkmcnt(0)")
        for k in range(4): a(f"v_min_u32 v{20+k}, 64, v{20+k}\nv_lshl_add_u32 v{20+k}, v{20+k}, 2, v33")
        for k in range(4): a(f"s_mov_b64 exec, s[{52+2*k}:{53+2*k}]\nds_write_b32 v{20+k}, v{16+k}")
        a("s_mov_b64 exec, -1\ns_waitcnt lgkmcnt(0)\ns_barrier")
        a("ds_read_b32 v21, v33 offset:512\nds_read_b32 v24, v27 offset:1024")
        for b in range(4): a(f"ds_read_b128 {vr(40+4*b,4)}, v33 offset:{16*b}")
        a(f"s_waitcnt lgkmcnt(0)\nv_readfirstlane_b32 s47, v21\nv_mov_b32 v21, 0\ns_cmp_gt_u32 s47, 64\ns_cbranch_scc1 {LV}")
        a(f"s_cmp_lg_u32 s3, 0\ns_cbranch_scc1 {L('sd255')}\ns_mov_b32 s46, 16")
        a(f"{L('rk')}:")
        rank16(24, 40, 21)
        a(f"s_cmp_ge_u32 s46, s47\ns_cbranch_scc1 {L('rkd')}\nv_add_u32 v33, 64, v33\ns_add_u32 s46, s46, 16")
        for b in range(4): a(f"ds_read_b128 {vr(40+4*b,4)}, v33 offset:{16*b}")
        a(f"s_waitcnt lgkmcnt(0)\ns_branch {L('rk')}")
        a(f"{L('rkd')}:\nv_cmp_gt_u32 vcc, 8, v21\nv_cmp_gt_u32 s[52:53], s47, v0\nv_lshlrev_b32 v28, 2, v21\nv_or_b32 v24, 0x800, v24\nv_add_u32 v29, {MISC+O_SEL}, v28")
        a(f"s_and_b64 exec, vcc, s[52:53]\ns_branch {L('tst')}")
        a(f"{LV}:\ns_mov_b32 s46, 0\ns_mov_b32 s50, 0x01010101\ns_mov_b32 s51, 0x01010101\ns_mov_b32 s47, 0")
        a(f"{RD}:")
        for k in range(4): a(f"v_subrev_u32 v{20+k}, s46, v{16+k}")
        a("v_max3_u32 v20, v20, v21, v22\nv_max_u32 v20, v20, v23")
        for pat in ("quad_perm:[1,0,3,2]", "quad_perm:[2,3,0,1]", "row_half_mirror", "row_mirror"):
            a(f"v_max_u32_dpp v20, v20, v20 {pat} {DPP}")
        for k in range(4): a(f"v_readlane_b32 s{52+k}, v20, {16*k}")
        a("s_max_u32 s52, s52, s53\ns_max_u32 s54, s54, s55\ns_max_u32 s52, s52, s54\ns_add_u32 s46, s46, s52")
        a("s_mov_b64 exec, s[50:51]\nv_mov_b32 v24, s46\ns_mov_b64 exec, -1\ns_lshl_b64 s[50:51], s[50:51], 1")
        a(f"s_add_u32 s47, s47, 1\ns_cmp_lt_u32 s47, 8\ns_cbranch_scc1 {RD}")
        a(f"s_cmp_lg_u32 s48, 0\ns_cbranch_scc1 {TD}")
        a(f"ds_write_b32 v26, v24\ns_waitcnt lgkmcnt(0)\ns_barrier\ns_cmp_lg_u32 s3, 0\ns_cbranch_scc1 {L('sd255')}")
        a("ds_read_b32 v16, v27\ns_mov_b32 s48, 1\ns_waitcnt lgkmcnt(0)")
        a(f"v_mov_b32 v17, v16\nv_mov_b32 v18, v16\nv_mov_b32 v19, v16\ns_branch {LV}")
        a(f"{TD}:")
        a("v_or_b32 v24, 0x800, v24\ns_mov_b64 exec, 0xff")
        a(f"{L('tst')}:\nbuffer_store_dword v24, v28, s[24:27], 0 offen offset:128 {self.stfl}")
        self.stamp(7)
        a("s_waitcnt vmcnt(0)\ns_barrier")
        a(f"{L('swr')}:\nds_write_b32 v29, v24\ns_mov_b64 exec, 1\nv_mov_b32 v1, {MISC}\nv_mov_b32 v24, 0x800\nds_or_b32 v1, v24 offset:{O_SEL}\ns_mov_b64 exec, -1\ns_waitcnt lgkmcnt(0)")
        a(f"s_branch {L('sbar')}")
        a(f"{L('sd255')}:\ns_barrier")
        a(f"{L('sdone')}:")
        a(f"v_mov_b32 v1, {MISC}\ns_mov_b32 s59, 2\ns_cmp_ge_u32 s3, 4\ns_cbranch_scc1 {L('p2')}")
        if not self.bigt:
            a(f"s_cmp_eq_u32 s2, {TOPWG}\ns_mov_b32 s36, {self.c1+31}\ns_cselect_b32 s36, {self.c1+45}, s36\ns_add_u32 s36, s3, s36")
            a(f"{L('st1')}:")
            wchunk(16, 17)
            a(f"s_add_u32 s36, s36, 3\ns_cmp_lt_u32 s36, 90\ns_cbranch_scc1 {L('st1')}")
        a(f"{L('st2')}:")
        srd(a, 8, 84, 0x200000)
        self.wo_touch_addr(16, 18)
        a(f"s_add_u32 s36, s3, {23 if self.wok < 50 else -1}\ns_and_b32 s38, s28, 3")
        a(f"{L('stl')}:\ns_lshl_b32 s37, s36, 2\ns_add_u32 s37, s37, s38\ns_lshl_b32 s37, s37, 14\nbuffer_load_dword v17, v16, s[8:11], s37 offen")
        a(f"s_add_u32 s36, s36, 3\ns_cmp_lt_u32 s36, 32\ns_cbranch_scc1 {L('stl')}")
        if not self.cbs:
            a("s_and_b32 s37, s28, 4\ns_lshl_b32 s37, s37, 8\nv_lshl_add_u32 v16, v0, 11, s37\ns_sub_u32 s36, s3, 1")
            a(f"{L('stm')}:\ns_lshl_b32 s37, s36, 17\nbuffer_load_dword v17, v16, s[8:11], s37 offen offset:384")
            a(f"s_add_u32 s36, s36, 3\ns_cmp_lt_u32 s36, 16\ns_cbranch_scc1 {L('stm')}")
        a(f"{L('sbar')}:\nv_mov_b32 v1, {MISC}\ns_barrier\ns_waitcnt vmcnt(0)")
        if self.agg:
            a(f"s_cmp_lg_u32 s2, 255\ns_cbranch_scc1 {L('help2')}\ns_cmp_lg_u32 s3, 1\ns_cbranch_scc1 {L('help2')}")
            self.spin(O_WO, 16, 49, ("s_cmp_ge_u32", "4"), sleep=4)
            a(f"v_min_u32 v7, 55, v0\nv_lshlrev_b32 v7, 7, v7\nv_add_u32 v7, {PFLAG_OFF:#x}, v7")
            a(f"s_mov_b32 s49, 0\n{L('ap')}:\n{self.pl(8, 7, 's[20:23]')}\ns_waitcnt vmcnt(0)\nv_cmp_eq_u32 vcc, 0, v8\ns_add_u32 s49, s49, 1\ns_cmp_eq_u64 vcc, 0\ns_cbranch_scc1 {L('aq')}")
            a(f"s_cmp_lt_u32 s49, {POLL_MAX:#x}\ns_cbranch_scc0 {L('aq')}\ns_mov_b64 exec, vcc\ns_sleep 8\ns_branch {L('ap')}\n{L('aq')}:")
            a("s_mov_b64 exec, 1\nv_mov_b32 v7, 64\nv_mov_b32 v8, 1\nbuffer_store_dword v8, v7, s[24:27], 0 offen sc1\ns_mov_b64 exec, -1")
        a(f"s_branch {L('help2')}")
        a.hist = []

HDR = open("parallel_sum__sliding_local_dilated__moe_arch_mod__prompt.s.ref").read().split("; Override launch")[0]
KNAME = "parallel_sum__sliding_local_dilated__moe_arch_mod__prompt_kernel"
def build(path, **kw):
    a = Asm()
    a.raw(HDR.rstrip())
    a.raw(f"; @launch grid=(256,1,1) block=(512,1,1) lds={F_LDS}")
    a.raw('.amdgcn_target "amdgcn-amd-amdhsa--gfx950"\n.text')
    g = Gen(a, KNAME, **kw)
    g.name = "F"; g.END = "F_end"
    kernel_header(a, KNAME)
    _kh = globals()["kernel_header"]
    globals()["kernel_header"] = lambda a, n: None
    g.gen()
    globals()["kernel_header"] = _kh
    a.raw('.section .rodata,"a"')
    a.raw(kernel_desc(KNAME))
    open(path, "w").write(a.text())

BEST = dict(p2i=3, upf=29, ch=1, chb=1, snk=1, fai=1, nf=1, fst=1, i2e=0)
if __name__ == "__main__":
    build("g_st.s", stamps=True, **BEST)
    build("g.s", **BEST)
```
